```python
import torch

def _softmax(x, axis=-1):
    return torch.softmax(x, dim=axis)
def _gelu(x):
    return torch.nn.functional.gelu(x, approximate="tanh")
def _silu(x):
    return torch.nn.functional.silu(x)
def _sigmoid(x):
    return torch.sigmoid(x)
def _layernorm(x, axis=-1, eps=1e-5):
    m = x.mean(dim=axis, keepdim=True)
    v = x.var(dim=axis, keepdim=True, unbiased=False)
    return (x - m) / torch.sqrt(v + eps)
def _scatter_add(tgt, idx, src, axis=0):
    return tgt.clone().index_add_(axis, idx, src)
def _segment_sum(src, seg, n):
    out = torch.zeros((n,) + src.shape[1:], dtype=src.dtype)
    return out.index_add_(0, seg, src)
def _pad(x, pw):
    flat = tuple(v for pair in reversed(pw) for v in pair)
    return torch.nn.functional.pad(x, flat)

kernel_name = 'concat_heads__mha_block_cached__mha_block_cached__near_ridge'

def setup_inputs():

    _w = (lambda a: (lambda t: t.to(torch.bfloat16) if t.is_floating_point() else t)(torch.as_tensor(a)))
    def _A_setup():
        B, Sq, D = 8, 128, 448
        H, Sk, Dh = 16, 1024, 256
        return {
            "x": _w((lambda *s: torch.randn(*s, dtype=torch.bfloat16) * 0.8)(B, Sq, D)),
            "k_cache": _w((lambda *s: torch.randn(*s, dtype=torch.bfloat16) * 0.8)(B, H, Sk, Dh)),
            "v_cache": _w((lambda *s: torch.randn(*s, dtype=torch.bfloat16) * 0.05)(B, H, Sk, Dh)),
            "wq": _w((lambda *s: torch.randn(*s, dtype=torch.bfloat16) * 0.8)(D, H * Dh) * (D ** -0.5)),
            "wo": _w((lambda *s: torch.randn(*s, dtype=torch.bfloat16) * 0.05)(H * Dh, D) * ((H * Dh) ** -0.5)),
        }
    _A_in = _A_setup()

    def _B_setup():
        B, Sq, D = 8, 128, 448
        H, Sk, Dh = 16, 1024, 256
        return {
            "x": _w((lambda *s: torch.randn(*s, dtype=torch.bfloat16) * 0.8)(B, Sq, D)),
            "k_cache": _w((lambda *s: torch.randn(*s, dtype=torch.bfloat16) * 0.8)(B, H, Sk, Dh)),
            "v_cache": _w((lambda *s: torch.randn(*s, dtype=torch.bfloat16) * 0.05)(B, H, Sk, Dh)),
            "wq": _w((lambda *s: torch.randn(*s, dtype=torch.bfloat16) * 0.8)(D, H * Dh) * (D ** -0.5)),
            "wo": _w((lambda *s: torch.randn(*s, dtype=torch.bfloat16) * 0.05)(H * Dh, D) * ((H * Dh) ** -0.5)),
        }
    _B_in = _B_setup()

    return {
        "A_x": _A_in["x"],
        "A_k_cache": _A_in["k_cache"],
        "A_v_cache": _A_in["v_cache"],
        "A_wq": _A_in["wq"],
        "A_wo": _A_in["wo"],
        "B_x": _B_in["x"],
        "B_k_cache": _B_in["k_cache"],
        "B_v_cache": _B_in["v_cache"],
        "B_wq": _B_in["wq"],
        "B_wo": _B_in["wo"],
    }

def reference(A_x, A_k_cache, A_v_cache, A_wq, A_wo, B_x, B_k_cache, B_v_cache, B_wq, B_wo):
    def _A_ref(x, k_cache, v_cache, wq, wo):
        B, Sq, D = x.shape
        H, Dh = 16, 256
        q = (lambda x, *d: x.permute(*d))((x @ wq).reshape(B, Sq, H, Dh), 0, 2, 1, 3)
        scores = torch.einsum("bhqd,bhkd->bhqk", q, k_cache) * (Dh ** -0.5)
        p = _softmax(scores, axis=-1)
        o = torch.einsum("bhqk,bhkd->bhqd", p, v_cache)
        return (lambda x, *d: x.permute(*d))(o, 0, 2, 1, 3).reshape(B, Sq, H * Dh) @ wo

    def _B_ref(x, k_cache, v_cache, wq, wo):
        B, Sq, D = x.shape
        H, Dh = 16, 256
        q = (lambda x, *d: x.permute(*d))((x @ wq).reshape(B, Sq, H, Dh), 0, 2, 1, 3)
        scores = torch.einsum("bhqd,bhkd->bhqk", q, k_cache) * (Dh ** -0.5)
        p = _softmax(scores, axis=-1)
        o = torch.einsum("bhqk,bhkd->bhqd", p, v_cache)
        return (lambda x, *d: x.permute(*d))(o, 0, 2, 1, 3).reshape(B, Sq, H * Dh) @ wo

    a = _A_ref(A_x, A_k_cache, A_v_cache, A_wq, A_wo)
    b = _B_ref(B_x, B_k_cache, B_v_cache, B_wq, B_wo)
    return torch.concatenate([a, b], axis=-1)
```

```python
NAME = "concat_heads__mha_block_cached__mha_block_cached__near_ridge"
WS_BYTES = 284950528
STAMP_OFF = WS_BYTES - (1 << 20)

class Asm:
    def __init__(self):
        self.l = []
    def __call__(self, s=""):
        for line in s.split("\n"):
            self.l.append(line)
    def text(self):
        return "\n".join(self.l) + "\n"

def header(launches):
    s = ""
    for (k, g, b, lds) in launches:
        if k is None:
            s += f"; @launch grid=({g},1,1) block=({b},1,1) lds={lds}\n"
        else:
            s += f"; @launch kernel={k} grid=({g},1,1) block=({b},1,1) lds={lds}\n"
    s += '.amdgcn_target "amdgcn-amd-amdhsa--gfx950"\n.text\n'
    return s

def kstart(k):
    return f".globl {k}\n.p2align 8\n.type {k},@function\n{k}:\n"

def kdesc(k, vgpr, accum, sgpr=102):
    return f""".section .rodata,"a"
.p2align 6
.amdhsa_kernel {k}
  .amdhsa_next_free_vgpr {vgpr}
  .amdhsa_next_free_sgpr {sgpr}
  .amdhsa_accum_offset {accum}
  .amdhsa_group_segment_fixed_size 0
  .amdhsa_kernarg_size 104
  .amdhsa_user_sgpr_count 2
  .amdhsa_user_sgpr_kernarg_segment_ptr 1
  .amdhsa_system_sgpr_workgroup_id_x 1
  .amdhsa_float_denorm_mode_32 3
.end_amdhsa_kernel
.text
"""
```

```python
import re
def regs(tok):
    tok = tok.strip()
    neg = tok.lstrip('-')
    m = re.fullmatch(r'([vas])\[(\d+):(\d+)\]', neg)
    if m: return {(m.group(1), i) for i in range(int(m.group(2)), int(m.group(3)) + 1)}
    m = re.fullmatch(r'([vas])(\d+)', neg)
    if m: return {(m.group(1), int(m.group(2)))}
    if neg == 'vcc': return {('s', 'vcc')}
    if neg == 'm0': return {('s', 'm0')}
    if neg == 'exec': return {('s', 'exec')}
    return set()
TRANS = ('v_exp_f32', 'v_rcp_f32', 'v_log_f32', 'v_rsq_f32', 'v_sqrt_f32')
def parse(line):
    line = line.split(';')[0].strip()
    if not line or line.endswith(':') or line.startswith('.'): return None
    p = line.split(None, 1)
    op = p[0]; args = []
    if len(p) > 1:
        args = [x.strip() for x in re.split(r',', p[1])]
        last = args[-1].split()
        args[-1] = last[0] if last else ''
        mods = last[1:]
    else: mods = []
    d = dict(op=op, w=set(), r=set(), cls='other', ws=1, line=line, srcc=set(), ab=set(), data=set())
    if op == 's_nop': d['ws'] = int(args[0], 0) + 1
    elif op.startswith('v_mfma'):
        d['cls'] = 'mfma'; d['w'] = regs(args[0]); d['ab'] = regs(args[1]) | regs(args[2]); d['srcc'] = regs(args[3]); d['r'] = d['ab'] | d['srcc']
    elif op.startswith('v_'):
        d['cls'] = 'valu'
        d['w'] = regs(args[0])
        for a in args[1:]: d['r'] |= regs(a)
        if op.startswith('v_permlane'): d['w'] |= regs(args[1]); d['r'] |= regs(args[0]); d['cls'] = 'perm'
        if op.startswith('v_fmac') : d['r'] |= regs(args[0])
        if op.startswith('v_readfirstlane') or op.startswith('v_readlane'): d['cls'] = 'rfl'
        if op.startswith('v_add_co') or op.startswith('v_addc_co'): d['w'] |= regs(args[1])
    elif op.startswith('ds_read'):
        d['cls'] = 'ds'; d['w'] = regs(args[0]); d['r'] = regs(args[1])
    elif op.startswith('ds_write'):
        d['cls'] = 'ds'; d['r'] = regs(args[0]) | regs(args[1])
    elif op.startswith('buffer_load'):
        d['cls'] = 'vmem'
        if 'lds' in mods:
            for a in args: d['r'] |= regs(a)
            d['r'] |= {('s', 'm0')}; d['dma'] = True
        else:
            d['w'] = regs(args[0])
            for a in args[1:]: d['r'] |= regs(a)
    elif op.startswith('buffer_store') or op.startswith('buffer_atomic'):
        d['cls'] = 'vmem'
        for a in args: d['r'] |= regs(a)
        if 'x4' in op or 'x3' in op: d['data'] = regs(args[0])
    elif op.startswith('global_load'):
        d['cls'] = 'vmem'; d['w'] = regs(args[0])
        for a in args[1:]: d['r'] |= regs(a)
    elif op.startswith('s_'):
        d['cls'] = 'salu'
        if args and not op.startswith(('s_cmp', 's_cbranch', 's_branch', 's_waitcnt', 's_barrier', 's_setpc', 's_sleep', 's_setprio', 's_endpgm')):
            d['w'] = regs(args[0])
            for a in args[1:]: d['r'] |= regs(a)
        else:
            for a in args: d['r'] |= regs(a)
    return d
def check(text):
    ins = [x for x in (parse(l) for l in text.split('\n')) if x]
    errs = []
    for i, c in enumerate(ins):
        dist = 0
        for j in range(i - 1, max(-1, i - 24), -1):
            p = ins[j]
            need = 0; why = ''
            isv = lambda x: x['cls'] in ('valu', 'perm', 'rfl')
            if p['cls'] == 'mfma':
                if c['cls'] == 'mfma':
                    if p['w'] & c['ab']: need, why = 12, 'mfma D->A/B'
                    elif (p['w'] & c['srcc']) and p['w'] != c['srcc']: need, why = 10, 'mfma D->C partial'
                elif (isv(c) or c['cls'] in ('vmem', 'ds')) and (p['w'] & (c['r'] | c['w'])): need, why = 12, 'mfma D->valu/mem'
                if isv(c) and (p['srcc'] & c['w']) and need < 7: need, why = 7, 'mfma C WAR'
            if isv(p):
                vw = {x for x in p['w'] if x[0] in 'va'}; sw = {x for x in p['w'] if x[0] == 's'}
                if c['cls'] == 'mfma' and (vw & c['r']): need, why = 2, 'valu->mfma'
                if c['cls'] == 'perm' and (vw & c['r']): need, why = 2, 'valu->permlane'
                if c['cls'] == 'rfl' and (vw & c['r']): need, why = 1, 'valu->readlane'
                if p['op'].startswith(TRANS) and isv(c) and not c['op'].startswith(TRANS) and (vw & c['r']): need, why = max(need, 1), 'trans->valu'
                if sw and isv(c) and (sw & c['r']): need, why = max(need, 2), 'valu sgpr->valu'
                if sw and c['cls'] == 'vmem' and (sw & c['r']): need, why = 5, 'valu sgpr->vmem'
            if p['cls'] == 'salu' and ('s', 'm0') in p['w'] and c.get('dma'): need, why = 1, 'm0->dma'
            if p['data'] and (p['data'] & c['w']): need, why = 2, 'store data WAR'
            if need > dist:
                errs.append(f"{why}: need {need} have {dist}\n    {p['line']}\n    {c['line']}")
            dist += p['ws']
            if dist >= 20: break
    return errs
if __name__ == '__main__':
    import sys
    e = check(open(sys.argv[1]).read())
    print(len(e), 'hazards'); print('\n'.join(e[:20]))
```

```python
import sys, math, struct
from asmlib import *
import hazard

def f32bits(x): return struct.unpack("<I", struct.pack("<f", x))[0]

HDR = open("cdna_kernels/" + NAME + ".s.ref").read().split("; Override launch geometry")[0]

V_KRD = 1
V_TRD = 9
V_KDMA = 13
V_VDMA = 17
V_WODMA = 19
V_WORD = 20
V_M = 22; V_L = 23
V_T = 24
V_ALPHA = 30
V_ST = 31
V_P = 32
V_S = 48
V_Q = 64
V_O = 128
V_WQDMA = 32
V_XDMA = 34
V_XRD = 36
V_QTR = 40
V_XRB = 44
A_FR = 0
A_X = 32
NFR = 8
S_X, S_K, S_V, S_WQ, S_WO, S_WS = 4, 8, 12, 16, 20, 24
S_W = 28; S_WQ4 = 29; S_OFF = 30; S_C = 31; S_THR = 32; S_RET = 36
S_STAMP = 64
def srd(s): return f"s[{s}:{s+3}]"
def vr(b, n): return f"v[{b}:{b+n-1}]"
def ar(b, n): return f"a[{b}:{b+n-1}]"

class Gen:
    def __init__(self, cfg):
        self.cfg = cfg
        self.a = Asm()
        self.nvm = 0; self.nlg = 0
        self.done = {}
        self.slot = {}
        self.fr = 0
        self.nstamp = 0
        self.covered = set()
    def e(self, s): self.a("    " + s)
    def vm(self, s): self.e(s); self.nvm += 1
    def lg(self, s): self.e(s); self.nlg += 1
    def emit(self, item):
        if callable(item): item()
        elif isinstance(item, tuple):
            {"vm": self.vm, "lg": self.lg}[item[0]](item[1])
        else: self.e(item)
    def stamp(self):
        if not self.cfg.get("stamps"): return
        s = S_STAMP + 2 * self.nstamp; self.nstamp += 1
        self.e(f"s_memrealtime s[{s}:{s+1}]")
        self.e("s_waitcnt lgkmcnt(0)")
    def wait_chunks(self, chunks):
        last = max(self.done[c] for c in chunks)
        n = min(63, self.nvm - last)
        if not all(c in self.covered for c in chunks):
            self.e(f"s_waitcnt vmcnt({n})")
        for c, d in self.done.items():
            if d <= last: self.covered.add(c)
    def dma(self, ch):
        kind, idx = ch
        slot = self.slot[ch]
        pk = self.cfg.get("pol_kv", "nt"); pw = self.cfg.get("pol_w", ""); px = self.cfg.get("pol_x", ""); po = self.cfg.get("pol_wo", "")
        groups = []
        for i in range(4):
            g = []
            if i == 0: g.append(f"s_add_u32 m0, s{S_WQ4}, {slot*16384}")
            if kind == "K":
                if i == 0: g.append(f"s_mov_b32 s{S_OFF}, {idx*16384}")
                g.append(("vm", f"buffer_load_dwordx4 v{V_KDMA+i}, {srd(S_K)}, s{S_OFF} offen offset:{i*1024} {pk} lds"))
            elif kind == "V":
                if i == 0: g.append(f"s_mov_b32 s{S_OFF}, {idx*16384}")
                g.append(("vm", f"buffer_load_dwordx4 v{V_VDMA+(i&1)}, {srd(S_V)}, s{S_OFF} offen offset:{i*1024} {pk} lds"))
            elif kind == "W":
                g.append(f"s_mov_b32 s{S_OFF}, {idx*32*8192 + i*(2*8192-1024)}")
                g.append(("vm", f"buffer_load_dwordx4 v{V_WQDMA+(i&1)}, {srd(S_WQ)}, s{S_OFF} offen offset:{i*1024} {pw} lds"))
            elif kind == "X":
                g.append(f"s_mov_b32 s{S_OFF}, {idx*128 + i*(8*896-1024)}")
                g.append(("vm", f"buffer_load_dwordx4 v{V_XDMA+(i&1)}, {srd(S_X)}, s{S_OFF} offen offset:{i*1024} {px} lds"))
            elif kind == "O":
                c, half = idx >> 1, idx & 1
                g.append(f"s_mov_b32 s{S_OFF}, {half*128*896 + c*128 + i*(8*896-1024)}")
                g.append(("vm", f"buffer_load_dwordx4 v{V_WODMA}, {srd(S_WO)}, s{S_OFF} offen offset:{i*1024} {po} lds"))
            if i == 3:
                def mark(ch=ch): self.done[ch] = self.nvm
                g.append(mark)
            groups.append(g)
        return groups
    def stream(self, ops, fill, D=4, pre=None):
        pre = pre or {}
        n = len(ops); rdone = [None] * n; frs = [None] * n
        def doreads(i):
            for it in pre.get(i, []): self.emit(it)
            f = A_FR + 4 * (self.fr % NFR); self.fr += 1
            frs[i] = f
            for r in ops[i]["reads"]:
                self.lg(r.format(f=ar(f, 4), f0=ar(f, 2), f2=ar(f + 2, 2)))
            rdone[i] = self.nlg
        for i in range(min(D, n)): doreads(i)
        for it in fill.get(-1, []): self.emit(it)
        for i in range(n):
            w = self.nlg - rdone[i]
            assert w <= 15
            self.e(f"s_waitcnt lgkmcnt({w})")
            self.e(ops[i]["mf"].format(f=ar(frs[i], 4)))
            if i + D < n: doreads(i + D)
            for it in fill.get(i, []): self.emit(it)

MF = "v_mfma_f32_32x32x16_bf16"
def spread(fill, groups, positions):
    assert len(positions) >= len(groups), (len(positions), len(groups))
    for g, p in zip(groups, positions):
        fill.setdefault(p, []).extend(g)

def tr_ops(addr, base, bfrag, first_zero):
    ops = []
    for db in range(8):
        for tt in range(2):
            off = base + tt * 8192 + (db >> 2) * 256
            acc = vr(V_O + 16 * db, 16)
            c = "0" if (first_zero and tt == 0) else acc
            ops.append(dict(reads=[f"ds_read_b64_tr_b16 {{f0}}, v{addr+(db&3)} offset:{off}",
                                   f"ds_read_b64_tr_b16 {{f2}}, v{addr+(db&3)} offset:{off+2048}"],
                            mf=f"{MF} {acc}, {{f}}, {bfrag(tt)}, {c}"))
    return ops

def softmax_items(pn):
    S = V_S; T = V_T; it = []
    it += [f"v_max3_f32 v{T}, v{S}, v{S+1}, v{S+2}", f"v_max3_f32 v{T+1}, v{S+3}, v{S+4}, v{S+5}",
           f"v_max3_f32 v{T+2}, v{S+6}, v{S+7}, v{S+8}", f"v_max3_f32 v{T+3}, v{S+9}, v{S+10}, v{S+11}",
           f"v_max3_f32 v{T+4}, v{S+12}, v{S+13}, v{S+14}", f"v_max3_f32 v{T}, v{T}, v{T+1}, v{S+15}",
           f"v_max3_f32 v{T+2}, v{T+2}, v{T+3}, v{T+4}", f"v_max_f32 v{T}, v{T}, v{T+2}",
           f"v_mov_b32 v{T+1}, v{T}", "s_nop 1", f"v_permlane32_swap_b32 v{T}, v{T+1}",
           f"v_max_f32 v{T}, v{T}, v{T+1}", f"v_mul_f32 v{T}, s{S_C}, v{T}", f"v_sub_f32 v{T+1}, v{T}, v{V_M}",
           f"v_cmp_lt_f32 vcc, s{S_THR}, v{T+1}", "s_nop 1", f"v_cndmask_b32 v{T}, v{V_M}, v{T}, vcc",
           f"v_sub_f32 v{T+1}, v{V_M}, v{T}", f"v_exp_f32 v{V_ALPHA}, v{T+1}", f"v_mov_b32 v{V_M}, v{T}",
           f"v_mul_f32 v{V_L}, v{V_L}, v{V_ALPHA}"]
    fma = lambda i: f"v_fma_f32 v{S+i}, v{S+i}, s{S_C}, -v{V_M}"
    ex = lambda i: f"v_exp_f32 v{S+i}, v{S+i}"
    add = lambda i: f"v_add_f32 v{V_L}, v{V_L}, v{S+i}"
    cvt = lambda p: f"v_cvt_pk_bf16_f32 v{pn+p}, v{S+2*p}, v{S+2*p+1}"
    it += [fma(0), fma(1), ex(0), ex(1)]
    for p in range(1, 8):
        it += [fma(2*p), fma(2*p+1), ex(2*p), add(2*p-2), ex(2*p+1), add(2*p-1), cvt(p-1)]
    it += [add(14), add(15), cvt(7)]
    return it

def plan(cfg):
    iss = {}
    def add(p, c): iss.setdefault(p, []).append(c)
    for c in [("X", 0), ("W", 0), ("W", 1), ("K", 0)]: add(-1, c)
    torder = [("K", 1), ("V", 0), ("K", 2), ("V", 1), ("K", 3), ("V", 2)]
    tq = dict(zip(cfg.get("tpoints", [3, 5, 7, 9, 11, 12]), torder))
    for j in range(14):
        if j % 2 == 0 and (j + 2) // 2 < 7: add(j, ("X", (j + 2) // 2))
        if j + 2 < 14: add(j, ("W", j + 2))
        if j in tq: add(j, tq[j])
    skip = cfg.get("skip", 4)
    nk, nv = 4, 3
    for t in range(32):
        dist = 3 if t < skip else 2
        while nk <= min(31, t + dist): add(14 + t, ("K", nk)); nk += 1
        while nv <= min(31, t + dist - 1): add(14 + t, ("V", nv)); nv += 1
        if t == 30 and nv <= 31: add(14 + t, ("V", nv)); nv += 1
    assert nk == 32 and nv == 32
    use = lambda c: {"W": c[1], "X": 2 * c[1], "K": 14 + c[1], "V": 15 + c[1], "O": 47 + c[1]}[c[0]]
    def release(c):
        if c[0] == "O" or c == ("V", 31): return use(c) + 2
        return use(c) + 1
    slot = {}
    busy = {s: [] for s in range(10)}
    ipoint = {c: p for p, l in iss.items() for c in l}
    def free(s, a, b): return all(b <= x or a >= y for x, y in busy[s])
    def put(c, s):
        a, b = ipoint[c], release(c)
        assert free(s, a, b), (c, s, a, b, busy[s])
        busy[s].append((a, b)); slot[c] = s
    for kind, base in (("K", 0), ("V", 4)):
        for i in range(32):
            c = (kind, i)
            cand = [s for s in range(base, base + 4) if free(s, ipoint[c], release(c))]
            assert cand, c
            put(c, cand[0])
    for c in sorted([c for c in ipoint if c[0] in "WX"], key=lambda c: -release(c)):
        cand = [s for s in range(10) if free(s, ipoint[c], release(c))]
        assert cand, (c, busy)
        put(c, cand[0])
    p = 14 + cfg.get("wo_start", 10)
    for u in range(14):
        c = ("O", u)
        while True:
            cand = [s for s in range(10) if free(s, p, release(c))]
            if cand: break
            p += 1
        assert p < use(c)
        ipoint[c] = p; add(p, c); put(c, cand[0])
        if p < 14 + 29: p += cfg.get("wo_step", 2)
    return iss, slot

def main_kernel(cfg, K):
    g = Gen(cfg); a = g.a; e = g.e
    iss, g.slot = plan(cfg)
    if cfg.get("verbose"):
        for p in sorted(iss): print(p, [(c, g.slot[c]) for c in iss[p]])
    a(kstart(K))
    e("s_cmp_ge_u32 s2, 256")
    e("s_cbranch_scc1 L_end_main")
    e("s_load_dwordx16 s[40:55], s[0:1], 0")
    e("s_load_dwordx4 s[56:59], s[0:1], 64")
    e("s_load_dwordx2 s[60:61], s[0:1], 96")
    if cfg.get("stamps"):
        e(f"s_memrealtime s[{S_STAMP}:{S_STAMP+1}]"); g.nstamp = 1
    e("s_and_b32 s3, s2, 3")
    e("s_lshl_b32 s3, s3, 2")
    e("s_bfe_u32 s33, s2, 0x20003")
    e("s_or_b32 s33, s33, s3")
    e("s_lshr_b32 s34, s2, 5")
    e("s_bfe_u32 s35, s2, 0x10002")
    e("v_and_b32 v24, 63, v0")
    e("v_lshrrev_b32 v25, 6, v0")
    e("v_lshrrev_b32 v26, 5, v24")
    e(f"v_readfirstlane_b32 s{S_W}, v25")
    e("v_and_b32 v27, 31, v24")
    e(f"v_lshlrev_b32 v{V_ST}, 4, v24")
    e(f"s_lshl_b32 s{S_WQ4}, s{S_W}, 12")
    e("v_lshrrev_b32 v28, 3, v24")
    e("v_lshl_add_u32 v28, v25, 5, v28")
    e("v_mul_u32_u24 v28, 896, v28")
    e("v_and_b32 v29, 7, v24")
    e("v_lshrrev_b32 v30, 4, v24")
    e("v_xor_b32 v48, v29, v30")
    e(f"v_lshl_add_u32 v{V_XDMA}, v48, 4, v28")
    e("v_xor_b32 v48, 4, v48")
    e(f"v_lshl_add_u32 v{V_XDMA+1}, v48, 4, v28")
    e("v_and_b32 v48, 1, v30")
    e("v_lshlrev_b32 v48, 2, v48")
    e("v_xor_b32 v48, v29, v48")
    e(f"v_lshl_add_u32 v{V_WODMA}, v48, 4, v28")
    e("v_lshl_add_u32 v28, v25, 3, v26")
    e("v_lshlrev_b32 v48, 2, v26")
    e("v_xor_b32 v48, v27, v48")
    e("v_lshlrev_b32 v48, 4, v48")
    e("v_xor_b32 v49, 0x80, v48")
    e(f"v_lshl_add_u32 v{V_VDMA}, v28, 9, v48")
    e(f"v_lshl_add_u32 v{V_VDMA+1}, v28, 9, v49")
    e(f"v_lshl_add_u32 v{V_WQDMA}, v28, 13, v48")
    e(f"v_lshl_add_u32 v{V_WQDMA+1}, v28, 13, v49")
    e("v_and_b32 v48, 15, v28")
    e("v_xor_b32 v48, v27, v48")
    e("v_lshlrev_b32 v48, 4, v48")
    e(f"v_lshl_add_u32 v{V_KDMA}, v28, 9, v48")
    for i in range(1, 4):
        e(f"v_xor_b32 v{V_KDMA+i}, {(2*i)<<4}, v{V_KDMA}")
    e("s_waitcnt lgkmcnt(0)")
    e("s_cmp_eq_u32 s35, 0")
    for k in range(10):
        e(f"s_cselect_b32 s{40+k}, s{40+k}, s{50+k}")
    e("s_mul_i32 s3, s34, 114688")
    e(f"s_add_u32 s{S_X}, s40, s3"); e(f"s_addc_u32 s{S_X+1}, s41, 0"); e(f"s_mov_b32 s{S_X+2}, 114688"); e(f"s_mov_b32 s{S_X+3}, 0x20000")
    e("s_lshl_b32 s3, s33, 9")
    e(f"s_add_u32 s{S_WQ}, s46, s3"); e(f"s_addc_u32 s{S_WQ+1}, s47, 0"); e(f"s_sub_u32 s{S_WQ+2}, {448*8192}, s3"); e(f"s_mov_b32 s{S_WQ+3}, 0x20000")
    e("s_lshl_b32 s38, s34, 4")
    e("s_add_u32 s38, s38, s33")
    e("s_lshl_b32 s3, s38, 19")
    e(f"s_add_u32 s{S_K}, s42, s3"); e(f"s_addc_u32 s{S_K+1}, s43, 0"); e(f"s_mov_b32 s{S_K+2}, 524288"); e(f"s_mov_b32 s{S_K+3}, 0x20000")
    e(f"s_add_u32 s{S_V}, s44, s3"); e(f"s_addc_u32 s{S_V+1}, s45, 0"); e(f"s_mov_b32 s{S_V+2}, 524288"); e(f"s_mov_b32 s{S_V+3}, 0x20000")
    for c in iss[-1]:
        for grp in g.dma(c):
            for it in grp: g.emit(it)
    e("s_mul_i32 s3, s33, 229376")
    e(f"s_add_u32 s{S_WO}, s48, s3"); e(f"s_addc_u32 s{S_WO+1}, s49, 0"); e(f"s_mov_b32 s{S_WO+2}, 229376"); e(f"s_mov_b32 s{S_WO+3}, 0x20000")
    e("s_lshl_b32 s3, s35, 7")
    e("s_add_u32 s3, s3, s38")
    e("s_lshl_b32 s3, s3, 2")
    e(f"s_add_u32 s3, s3, s{S_W}")
    e("s_mul_i32 s3, s3, 28672")
    e(f"s_add_u32 s{S_WS}, s60, s3"); e(f"s_addc_u32 s{S_WS+1}, s61, 0"); e(f"s_mov_b32 s{S_WS+2}, 28672"); e(f"s_mov_b32 s{S_WS+3}, 0x20000")
    e(f"s_mov_b32 s{S_C}, {f32bits(math.log2(math.e)/16):#x}")
    e(f"s_mov_b32 s{S_THR}, {f32bits(cfg.get('thr', 8.0)):#x}")
    e("v_and_b32 v48, 0x13, v27")
    e("v_bfe_u32 v49, v27, 2, 1")
    e("v_lshl_or_b32 v48, v49, 3, v48")
    e("v_bfe_u32 v49, v27, 3, 1")
    e("v_lshl_or_b32 v48, v49, 2, v48")
    e("v_and_b32 v49, 15, v48")
    e("v_xor_b32 v49, v26, v49")
    e("v_lshlrev_b32 v49, 4, v49")
    e(f"v_lshl_add_u32 v{V_KRD}, v48, 9, v49")
    for s in range(1, 8):
        e(f"v_xor_b32 v{V_KRD+s}, {(2*s)<<4}, v{V_KRD}")
    e("v_bfe_u32 v48, v24, 2, 2")
    e("v_bfe_u32 v49, v24, 4, 1")
    e("v_and_b32 v50, 1, v24")
    e("v_bfe_u32 v51, v24, 1, 1")
    e("v_lshl_or_b32 v50, v50, 1, v51")
    e("v_lshlrev_b32 v50, 3, v50")
    e("v_lshl_or_b32 v50, v49, 5, v50")
    e("v_lshl_add_u32 v51, v26, 3, v48")
    e("v_lshl_or_b32 v52, v48, 6, v50")
    e("v_lshl_add_u32 v52, v51, 9, v52")
    e(f"v_add_u32 v{V_TRD}, 0x10000, v52")
    for d in range(1, 4):
        e(f"v_xor_b32 v{V_TRD+d}, {d<<6}, v{V_TRD}")
    e("v_lshrrev_b32 v52, 1, v48")
    e("v_lshl_or_b32 v52, v52, 6, v50")
    e(f"v_lshl_add_u32 v{V_WORD}, v51, 7, v52")
    e(f"v_xor_b32 v{V_WORD+1}, 64, v{V_WORD}")
    e("v_bfe_u32 v48, v27, 1, 3")
    e("v_xor_b32 v48, v26, v48")
    e("v_lshlrev_b32 v48, 4, v48")
    e("v_lshl_add_u32 v48, v27, 7, v48")
    e(f"v_lshl_add_u32 v{V_XRD}, v25, 12, v48")
    for s in range(1, 4):
        e(f"v_xor_b32 v{V_XRD+s}, {(2*s)<<4}, v{V_XRD}")
    e(f"v_mov_b32 v{V_M}, 0xff800000")
    e(f"v_mov_b32 v{V_L}, 0")
    for j in range(14):
        need = [("W", j), ("X", j >> 1)]
        sb = g.slot[("W", j)] * 16384 - 0x10000
        for d in range(4):
            e(f"v_add_u32 v{V_QTR+d}, {sb & 0xffffffff:#x}, v{V_TRD+d}")
        if j % 2 == 0:
            xb = g.slot[("X", j >> 1)] * 16384
            for s in range(4):
                e(f"v_add_u32 v{V_XRB+s}, {xb}, v{V_XRD+s}")
        g.wait_chunks(need)
        e("s_barrier")
        if j == 0: g.stamp()
        if j % 2 == 0:
            for s in range(4):
                g.lg(f"ds_read_b128 {ar(A_X + 4*(2*j+s), 4)}, v{V_XRB+s}")
        fill = {}
        groups = [grp for c in iss.get(j, []) for grp in g.dma(c)]
        spread(fill, groups, list(range(0, 16)))
        ops = tr_ops(V_QTR, 0, lambda tt: ar(A_X + 4 * (2 * j + tt), 4), j == 0)
        g.stream(ops, fill, D=4)
    e("s_nop 7"); e("s_nop 3")
    for p in range(64):
        e(f"v_cvt_pk_bf16_f32 v{V_Q+p}, v{V_O+2*p}, v{V_O+2*p+1}")
    g.stamp()
    stubs = []
    for t in range(32):
        need = [("K", t)] + ([("V", t - 1)] if t else [])
        g.wait_chunks(need)
        e("s_barrier")
        if t == 16: g.stamp()
        ops = []
        kb = g.slot[("K", t)] * 16384
        for s in range(16):
            c = "0" if s == 0 else vr(V_S, 16)
            ops.append(dict(reads=[f"ds_read_b128 {{f}}, v{V_KRD+(s&7)} offset:{kb + (s>>3)*256}"],
                            mf=f"{MF} {vr(V_S,16)}, {{f}}, {vr(V_Q+4*s,4)}, {c}"))
        fill = {}
        groups = [grp for c in iss.get(14 + t, []) for grp in g.dma(c)]
        spread(fill, groups, list(range(0, 16)))
        sm = softmax_items(V_P + 8 * (t & 1))
        if t == 0:
            g.stream(ops, fill)
            e("s_nop 7"); e("s_nop 3")
            for it in sm: e(it)
        else:
            pp = V_P + 8 * ((t - 1) & 1)
            ops += tr_ops(V_TRD, (g.slot[("V", t - 1)] - 4) * 16384, lambda tt: vr(pp + 4 * tt, 4), t == 1)
            pos = list(range(18, 32)); per = -(-len(sm) // len(pos))
            for k, it in enumerate(sm): fill.setdefault(pos[k // per], []).append(it)
            g.stream(ops, fill)
            e(f"s_cbranch_vccnz L_rs_{t}")
            a(f"L_rsb_{t}:")
            stubs.append(t)
    g.wait_chunks([("V", 31)])
    e("s_barrier")
    g.stamp()
    pp = V_P + 8
    ops = tr_ops(V_TRD, (g.slot[("V", 31)] - 4) * 16384, lambda tt: vr(pp + 4 * tt, 4), False)
    fill = {}; pre = {}
    D = 4
    groups = [grp for c in iss.get(46, []) for grp in g.dma(c)]
    spread(fill, groups, list(range(0, 12)))
    T = V_T
    fill.setdefault(0, []).extend([f"v_mov_b32 v{T}, v{V_L}", "s_nop 1", f"v_permlane32_swap_b32 v{V_L}, v{T}"])
    fill.setdefault(1, []).extend([f"v_add_f32 v{V_L}, v{V_L}, v{T}", f"v_rcp_f32 v{V_L}, v{V_L}"])
    for db in range(8):
        for p in range(8):
            fill.setdefault(2 * db + 4 + p // 4, []).append(f"v_cvt_pk_bf16_f32 v{V_Q+8*db+p}, v{V_O+16*db+2*p}, v{V_O+16*db+2*p+1}")
    V_ORD = V_KRD
    spol = cfg.get("pol_st", "sc1")
    for u in range(14):
        c, half = u >> 1, u & 1
        base_op = 16 + 16 * u
        ad = V_ORD + 2 * (u & 1)
        items = [f"v_add_u32 v{ad+nb}, {g.slot[('O', u)]*16384}, v{V_WORD+nb}" for nb in range(2)]
        def sync(u=u):
            if ("O", u) not in g.covered or iss.get(47 + u):
                if ("O", u) not in g.covered: g.wait_chunks([("O", u)])
                e("s_barrier")
        pre[base_op] = items + [sync]
        groups = [grp for cc in iss.get(47 + u, []) for grp in g.dma(cc)]
        spread(fill, groups, list(range(base_op - D, base_op - D + 12)))
        for t in range(8):
            for nb in range(2):
                acc = vr(V_O + 32 * (c & 1) + 16 * nb, 16)
                cc = "0" if (half == 0 and t == 0) else acc
                kk = 8 * half + t
                ops.append(dict(reads=[f"ds_read_b64_tr_b16 {{f0}}, v{ad+nb} offset:{t*2048}",
                                       f"ds_read_b64_tr_b16 {{f2}}, v{ad+nb} offset:{t*2048+512}"],
                                mf=f"{MF} {acc}, {{f}}, {vr(V_Q+4*kk,4)}, {cc}"))
    def epi(c):
        it = []
        ab = V_O + 32 * (c & 1); pk = V_O + 64 + 16 * (c & 1)
        for q in range(4):
            for p in range(4):
                r = ab + 8 * q + 2 * p
                it += [f"v_mul_f32 v{r}, v{V_L}, v{r}", f"v_mul_f32 v{r+1}, v{V_L}, v{r+1}", f"v_cvt_pk_bf16_f32 v{pk+4*q+p}, v{r}, v{r+1}"]
            if q == 0: it.append(f"s_mov_b32 s38, {c*4096}")
            it.append(("vm", f"buffer_store_dwordx4 {vr(pk+4*q,4)}, v{V_ST}, {srd(S_WS)}, s38 offen offset:{q*1024} {spol}"))
        return it
    for c in range(6):
        it = epi(c); p0 = 16 + 32 * (c + 1) + 3
        for k, x in enumerate(it): fill.setdefault(p0 + k // 2, []).append(x)
    g.stream(ops, fill, D=D, pre=pre)
    e("s_nop 7"); e("s_nop 3")
    for x in epi(6): g.emit(x)
    g.stamp()
    if cfg.get("stamps"):
        e("s_waitcnt vmcnt(0)")
        g.stamp()
        e("s_mov_b32 s24, s60"); e("s_mov_b32 s25, s61"); e(f"s_mov_b32 s26, {WS_BYTES}"); e("s_mov_b32 s27, 0x20000")
        e("s_lshl_b32 s38, s2, 7"); e(f"s_add_u32 s38, s38, {STAMP_OFF}")
        for k in range(2 * g.nstamp): e(f"v_mov_b32 v{32+k}, s{S_STAMP+k}")
        e("v_mov_b32 v3, 0"); e("v_cmp_eq_u32 vcc, 0, v0"); e("s_and_saveexec_b64 s[34:35], vcc"); e("s_cbranch_execz L_end_main")
        for k in range(g.nstamp): e(f"buffer_store_dwordx2 v[{32+2*k}:{33+2*k}], v3, s[24:27], s38 offen offset:{8*k}")
    a("L_end_main:")
    e("s_endpgm")
    for t in stubs:
        a(f"L_rs_{t}:")
        e(f"s_call_b64 s[{S_RET}:{S_RET+1}], L_rescale")
        e(f"s_branch L_rsb_{t}")
    a("L_rescale:")
    e("s_nop 15")
    for r in range(128): e(f"v_mul_f32 v{V_O+r}, v{V_ALPHA}, v{V_O+r}")
    e("s_nop 1")
    e(f"s_setpc_b64 s[{S_RET}:{S_RET+1}]")
    a(kdesc(K, 512, 256))
    return a.text()

def reduce_kernel(cfg, K):
    a = Asm(); e = lambda s: a("    " + s)
    a(kstart(K))
    e("s_cmp_ge_u32 s2, 448")
    e("s_cbranch_scc1 L_end_red")
    e("s_load_dwordx2 s[4:5], s[0:1], 80")
    e("s_load_dwordx2 s[8:9], s[0:1], 96")
    if cfg.get("stamps"): e("s_memrealtime s[40:41]")
    e("v_lshrrev_b32 v1, 6, v0")
    e("v_and_b32 v2, 63, v0")
    e("v_readfirstlane_b32 s3, v1")
    e("s_mul_i32 s12, s2, 9363")
    e("s_lshr_b32 s12, s12, 18")
    e("s_mul_i32 s13, s12, 28")
    e("s_sub_u32 s13, s2, s13")
    e("s_lshl_b32 s13, s13, 2")
    e("s_add_u32 s13, s13, s3")
    e("s_mul_i32 s14, s13, 9363")
    e("s_lshr_b32 s14, s14, 18")
    e("s_mul_i32 s15, s14, 28")
    e("s_sub_u32 s15, s13, s15")
    e("s_mul_i32 s16, s12, %d" % (16 * 114688))
    e("s_lshl_b32 s17, s13, 10")
    e("s_add_u32 s16, s16, s17")
    e("v_lshlrev_b32 v3, 4, v2")
    e("s_waitcnt lgkmcnt(0)")
    e(f"s_mov_b32 s10, {256*114688}"); e("s_mov_b32 s11, 0x20000")
    e(f"s_mov_b32 s6, {8*128*896*2}"); e("s_mov_b32 s7, 0x20000")
    rp = cfg.get("pol_rd", "")
    for h in range(16):
        e(f"buffer_load_dwordx4 v[{8+4*h}:{11+4*h}], v3, s[8:11], s16 offen {rp}")
        if h < 15: e("s_add_u32 s16, s16, 114688")
    e("s_and_b32 s17, s12, 7")
    e("s_lshl_b32 s17, s17, 7")
    e("s_lshl_b32 s18, s14, 5")
    e("s_add_u32 s17, s17, s18")
    e("s_mul_i32 s17, s17, 1792")
    e("s_lshr_b32 s18, s12, 3")
    e("s_mul_i32 s18, s18, 896")
    e("s_add_u32 s17, s17, s18")
    e("s_lshl_b32 s18, s15, 5")
    e("s_add_u32 s17, s17, s18")
    e("v_and_b32 v4, 31, v2")
    e("v_mul_u32_u24 v4, 1792, v4")
    e("v_lshrrev_b32 v5, 5, v2")
    e("v_lshl_add_u32 v4, v5, 4, v4")
    for h in range(16):
        e(f"s_waitcnt vmcnt({15-h})")
        for r in range(4):
            src = 8 + 4 * h + r
            if h == 0:
                e(f"v_lshlrev_b32 v{72+2*r}, 16, v{src}")
                e(f"v_and_b32 v{73+2*r}, 0xffff0000, v{src}")
            else:
                e(f"v_lshlrev_b32 v6, 16, v{src}")
                e(f"v_and_b32 v7, 0xffff0000, v{src}")
                e(f"v_add_f32 v{72+2*r}, v{72+2*r}, v6")
                e(f"v_add_f32 v{73+2*r}, v{73+2*r}, v7")
    for r in range(4): e(f"v_cvt_pk_bf16_f32 v{8+r}, v{72+2*r}, v{73+2*r}")
    e("buffer_store_dwordx4 v[8:11], v4, s[4:7], s17 offen")
    if cfg.get("stamps"):
        e("s_waitcnt vmcnt(0)")
        e("s_memrealtime s[42:43]")
        e("s_waitcnt lgkmcnt(0)")
        e("s_cmp_ge_u32 s2, 256"); e("s_cbranch_scc1 L_end_red")
        e(f"s_mov_b32 s10, {WS_BYTES}")
        e("s_lshl_b32 s38, s2, 7"); e(f"s_add_u32 s38, s38, {STAMP_OFF + 56}")
        for k in range(4): e(f"v_mov_b32 v{32+k}, s{40+k}")
        e("v_mov_b32 v3, 0"); e("v_cmp_eq_u32 vcc, 0, v0"); e("s_and_saveexec_b64 s[34:35], vcc"); e("s_cbranch_execz L_end_red")
        e("buffer_store_dwordx2 v[32:33], v3, s[8:11], s38 offen")
        e("buffer_store_dwordx2 v[34:35], v3, s[8:11], s38 offen offset:8")
    a("L_end_red:")
    e("s_endpgm")
    a(kdesc(K, 80, 80, 48))
    return a.text()

def build(cfg):
    K1 = "attn_kernel"; K2 = "red_kernel"
    txt = HDR + header([(K1, 256, 256, 163840), (K2, 448, 256, 0)]) + main_kernel(cfg, K1) + reduce_kernel(cfg, K2)
    errs = hazard.check(txt)
    if errs:
        print(len(errs), "HAZARDS"); print("\n".join(errs[:10])); raise SystemExit(1)
    return txt

if __name__ == "__main__":
    import json
    out = sys.argv[1]; cfg = json.loads(sys.argv[2]) if len(sys.argv) > 2 else {}
    open(out, "w").write(build(cfg))
```

```python
import sys, math, struct
from asmlib import *
import hazard

def f32bits(x): return struct.unpack("<I", struct.pack("<f", x))[0]

HDR = open("cdna_kernels/" + NAME + ".s.ref").read().split("; Override launch geometry")[0]

V_KRD = 1
V_TRD = 9
V_KDMA = 13
V_VDMA = 17
V_WODMA = 19
V_WORD = 20
V_M = 22; V_L = 23
V_T = 24
V_ALPHA = 30
V_ST = 31
V_P = 32
V_S = 48
V_Q = 64
V_O = 128
V_WQDMA = 32
V_XDMA = 34
V_XRD = 36
V_QTR = 40
V_XRB = 44
A_FR = 0
A_X = 32
NFR = 8
A_STAMP = 144
S_X, S_K, S_V, S_WQ, S_WO, S_WS = 4, 8, 12, 16, 20, 24
S_W = 28; S_WQ4 = 29; S_OFF = 30; S_C = 31; S_THR = 32; S_RET = 36
S_STAMP = 64
def srd(s): return f"s[{s}:{s+3}]"
def vr(b, n): return f"v[{b}:{b+n-1}]"
def ar(b, n): return f"a[{b}:{b+n-1}]"

class Gen:
    def __init__(self, cfg):
        self.cfg = cfg
        self.a = Asm()
        self.nvm = 0; self.nlg = 0
        self.done = {}
        self.slot = {}
        self.fr = 0
        self.nstamp = 0
        self.covered = set(); self.names = []
    def e(self, s): self.a("    " + s)
    def vm(self, s): self.e(s); self.nvm += 1
    def lg(self, s): self.e(s); self.nlg += 1
    def emit(self, item):
        if callable(item): item()
        elif isinstance(item, tuple):
            {"vm": self.vm, "lg": self.lg}[item[0]](item[1])
        else: self.e(item)
    def stamp(self, name, level=1):
        if self.cfg.get("stamps", 0) < level: return
        self.e(f"{self.cfg.get('clk','s_memrealtime')} s[{S_STAMP}:{S_STAMP+1}]")
        self.e("s_waitcnt lgkmcnt(0)")
        self.e(f"v_accvgpr_write_b32 a{A_STAMP+self.nstamp}, s{S_STAMP}")
        self.nstamp += 1; self.names.append(name)
        assert A_STAMP + self.nstamp <= 256
    def wait_chunks(self, chunks):
        last = max(self.done[c] for c in chunks)
        n = min(63, self.nvm - last)
        if not all(c in self.covered for c in chunks):
            self.e(f"s_waitcnt vmcnt({n})")
        for c, d in self.done.items():
            if d <= last: self.covered.add(c)
    def dma(self, ch):
        kind, idx = ch
        slot = self.slot[ch]
        pk = self.cfg.get("pol_kv", "nt"); pw = self.cfg.get("pol_w", ""); px = self.cfg.get("pol_x", ""); po = self.cfg.get("pol_wo", "")
        groups = []
        for i in range(4):
            g = []
            if i == 0: g.append(f"s_add_u32 m0, s{S_WQ4}, {slot*16384}")
            if kind == "K":
                if i == 0: g.append(f"s_mov_b32 s{S_OFF}, {idx*16384}")
                g.append(("vm", f"buffer_load_dwordx4 v{V_KDMA+i}, {srd(S_K)}, s{S_OFF} offen offset:{i*1024} {pk} lds"))
            elif kind == "V":
                if i == 0: g.append(f"s_mov_b32 s{S_OFF}, {idx*16384}")
                g.append(("vm", f"buffer_load_dwordx4 v{V_VDMA+(i&1)}, {srd(S_V)}, s{S_OFF} offen offset:{i*1024} {pk} lds"))
            elif kind == "W":
                g.append(f"s_mov_b32 s{S_OFF}, {idx*32*8192 + i*(2*8192-1024)}")
                g.append(("vm", f"buffer_load_dwordx4 v{V_WQDMA+(i&1)}, {srd(S_WQ)}, s{S_OFF} offen offset:{i*1024} {pw} lds"))
            elif kind == "X":
                g.append(f"s_mov_b32 s{S_OFF}, {idx*128 + i*(8*896-1024)}")
                g.append(("vm", f"buffer_load_dwordx4 v{V_XDMA+(i&1)}, {srd(S_X)}, s{S_OFF} offen offset:{i*1024} {px} lds"))
            elif kind == "O":
                c, half = idx >> 1, idx & 1
                g.append(f"s_mov_b32 s{S_OFF}, {half*128*896 + c*128 + i*(8*896-1024)}")
                g.append(("vm", f"buffer_load_dwordx4 v{V_WODMA}, {srd(S_WO)}, s{S_OFF} offen offset:{i*1024} {po} lds"))
            if i == 3:
                def mark(ch=ch): self.done[ch] = self.nvm
                g.append(mark)
            groups.append(g)
        return groups
    def stream(self, ops, fill, D=4, pre=None):
        pre = pre or {}
        n = len(ops); rdone = [None] * n; frs = [None] * n
        def doreads(i):
            for it in pre.get(i, []): self.emit(it)
            f = A_FR + 4 * (self.fr % NFR); self.fr += 1
            frs[i] = f
            for r in ops[i]["reads"]:
                self.lg(r.format(f=ar(f, 4), f0=ar(f, 2), f2=ar(f + 2, 2)))
            rdone[i] = self.nlg
        for i in range(min(D, n)): doreads(i)
        for it in fill.get(-1, []): self.emit(it)
        for i in range(n):
            w = self.nlg - rdone[i]
            assert w <= 15
            self.e(f"s_waitcnt lgkmcnt({w})")
            self.e(ops[i]["mf"].format(f=ar(frs[i], 4)))
            if i + D < n: doreads(i + D)
            for it in fill.get(i, []): self.emit(it)

MF = "v_mfma_f32_32x32x16_bf16"
def spread(fill, groups, positions):
    assert len(positions) >= len(groups), (len(positions), len(groups))
    for g, p in zip(groups, positions):
        fill.setdefault(p, []).extend(g)

def tr_ops(addr, base, bfrag, first_zero):
    ops = []
    for db in range(8):
        for tt in range(2):
            off = base + tt * 8192 + (db >> 2) * 256
            acc = vr(V_O + 16 * db, 16)
            c = "0" if (first_zero and tt == 0) else acc
            ops.append(dict(reads=[f"ds_read_b64_tr_b16 {{f0}}, v{addr+(db&3)} offset:{off}",
                                   f"ds_read_b64_tr_b16 {{f2}}, v{addr+(db&3)} offset:{off+2048}"],
                            mf=f"{MF} {acc}, {{f}}, {bfrag(tt)}, {c}"))
    return ops

def softmax_items(pn):
    S = V_S; T = V_T; it = []
    it += [f"v_max3_f32 v{T}, v{S}, v{S+1}, v{S+2}", f"v_max3_f32 v{T+1}, v{S+3}, v{S+4}, v{S+5}",
           f"v_max3_f32 v{T+2}, v{S+6}, v{S+7}, v{S+8}", f"v_max3_f32 v{T+3}, v{S+9}, v{S+10}, v{S+11}",
           f"v_max3_f32 v{T+4}, v{S+12}, v{S+13}, v{S+14}", f"v_max3_f32 v{T}, v{T}, v{T+1}, v{S+15}",
           f"v_max3_f32 v{T+2}, v{T+2}, v{T+3}, v{T+4}", f"v_max_f32 v{T}, v{T}, v{T+2}",
           f"v_mov_b32 v{T+1}, v{T}", "s_nop 1", f"v_permlane32_swap_b32 v{T}, v{T+1}",
           f"v_max_f32 v{T}, v{T}, v{T+1}", f"v_mul_f32 v{T}, s{S_C}, v{T}", f"v_sub_f32 v{T+1}, v{T}, v{V_M}",
           f"v_cmp_lt_f32 vcc, s{S_THR}, v{T+1}", "s_nop 1", f"v_cndmask_b32 v{T}, v{V_M}, v{T}, vcc",
           f"v_sub_f32 v{T+1}, v{V_M}, v{T}", f"v_exp_f32 v{V_ALPHA}, v{T+1}", f"v_mov_b32 v{V_M}, v{T}",
           f"v_mul_f32 v{V_L}, v{V_L}, v{V_ALPHA}"]
    fma = lambda i: f"v_fma_f32 v{S+i}, v{S+i}, s{S_C}, -v{V_M}"
    ex = lambda i: f"v_exp_f32 v{S+i}, v{S+i}"
    add = lambda i: f"v_add_f32 v{V_L}, v{V_L}, v{S+i}"
    cvt = lambda p: f"v_cvt_pk_bf16_f32 v{pn+p}, v{S+2*p}, v{S+2*p+1}"
    it += [fma(0), fma(1), ex(0), ex(1)]
    for p in range(1, 8):
        it += [fma(2*p), fma(2*p+1), ex(2*p), add(2*p-2), ex(2*p+1), add(2*p-1), cvt(p-1)]
    it += [add(14), add(15), cvt(7)]
    return it

def plan(cfg):
    iss = {}
    def add(p, c): iss.setdefault(p, []).append(c)
    for c in [("X", 0), ("W", 0), ("W", 1), ("K", 0)]: add(-1, c)
    torder = [("K", 1), ("V", 0), ("K", 2), ("V", 1), ("K", 3), ("V", 2)]
    tq = dict(zip(cfg.get("tpoints", [3, 5, 7, 9, 11, 12]), torder))
    for j in range(14):
        if j % 2 == 0 and (j + 2) // 2 < 7: add(j, ("X", (j + 2) // 2))
        if j + 2 < 14: add(j, ("W", j + 2))
        if j in tq: add(j, tq[j])
    skip = cfg.get("skip", 4)
    nk, nv = 4, 3
    for t in range(32):
        dist = 3 if t < skip else 2
        while nk <= min(31, t + dist): add(14 + t, ("K", nk)); nk += 1
        while nv <= min(31, t + dist - 1): add(14 + t, ("V", nv)); nv += 1
        if t == 30 and nv <= 31: add(14 + t, ("V", nv)); nv += 1
    assert nk == 32 and nv == 32
    use = lambda c: {"W": c[1], "X": 2 * c[1], "K": 14 + c[1], "V": 15 + c[1], "O": 47 + c[1]}[c[0]]
    def release(c):
        if c[0] == "O" or c == ("V", 31): return use(c) + 2
        return use(c) + 1
    slot = {}
    busy = {s: [] for s in range(10)}
    ipoint = {c: p for p, l in iss.items() for c in l}
    def free(s, a, b): return all(b <= x or a >= y for x, y in busy[s])
    def put(c, s):
        a, b = ipoint[c], release(c)
        assert free(s, a, b), (c, s, a, b, busy[s])
        busy[s].append((a, b)); slot[c] = s
    for kind, base in (("K", 0), ("V", 4)):
        for i in range(32):
            c = (kind, i)
            cand = [s for s in range(base, base + 4) if free(s, ipoint[c], release(c))]
            assert cand, c
            put(c, cand[0])
    for c in sorted([c for c in ipoint if c[0] in "WX"], key=lambda c: -release(c)):
        cand = [s for s in range(10) if free(s, ipoint[c], release(c))]
        assert cand, (c, busy)
        put(c, cand[0])
    p = 14 + cfg.get("wo_start", 10)
    for u in range(14):
        c = ("O", u)
        while True:
            cand = [s for s in range(10) if free(s, p, release(c))]
            if cand: break
            p += 1
        assert p < use(c)
        ipoint[c] = p; add(p, c); put(c, cand[0])
        if p < 14 + 29: p += cfg.get("wo_step", 2)
    return iss, slot

def main_kernel(cfg, K):
    g = Gen(cfg); a = g.a; e = g.e
    iss, g.slot = plan(cfg)
    if cfg.get("verbose"):
        for p in sorted(iss): print(p, [(c, g.slot[c]) for c in iss[p]])
    a(kstart(K))
    e("s_cmp_ge_u32 s2, 256")
    e("s_cbranch_scc1 L_end_main")
    e("s_load_dwordx16 s[40:55], s[0:1], 0")
    e("s_load_dwordx4 s[56:59], s[0:1], 64")
    e("s_load_dwordx2 s[60:61], s[0:1], 96")
    g.stamp("start")
    e("s_and_b32 s3, s2, 3")
    e("s_lshl_b32 s3, s3, 2")
    e("s_bfe_u32 s33, s2, 0x20003")
    e("s_or_b32 s33, s33, s3")
    e("s_lshr_b32 s34, s2, 5")
    e("s_bfe_u32 s35, s2, 0x10002")
    e("v_and_b32 v24, 63, v0")
    e("v_lshrrev_b32 v25, 6, v0")
    e("v_lshrrev_b32 v26, 5, v24")
    e(f"v_readfirstlane_b32 s{S_W}, v25")
    e("v_and_b32 v27, 31, v24")
    e(f"v_lshlrev_b32 v{V_ST}, 4, v24")
    e(f"s_lshl_b32 s{S_WQ4}, s{S_W}, 12")
    e("v_lshrrev_b32 v28, 3, v24")
    e("v_lshl_add_u32 v28, v25, 5, v28")
    e("v_mul_u32_u24 v28, 896, v28")
    e("v_and_b32 v29, 7, v24")
    e("v_lshrrev_b32 v30, 4, v24")
    e("v_xor_b32 v48, v29, v30")
    e(f"v_lshl_add_u32 v{V_XDMA}, v48, 4, v28")
    e("v_xor_b32 v48, 4, v48")
    e(f"v_lshl_add_u32 v{V_XDMA+1}, v48, 4, v28")
    e("v_and_b32 v48, 1, v30")
    e("v_lshlrev_b32 v48, 2, v48")
    e("v_xor_b32 v48, v29, v48")
    e(f"v_lshl_add_u32 v{V_WODMA}, v48, 4, v28")
    e("v_lshl_add_u32 v28, v25, 3, v26")
    e("v_lshlrev_b32 v48, 2, v26")
    e("v_xor_b32 v48, v27, v48")
    e("v_lshlrev_b32 v48, 4, v48")
    e("v_xor_b32 v49, 0x80, v48")
    e(f"v_lshl_add_u32 v{V_VDMA}, v28, 9, v48")
    e(f"v_lshl_add_u32 v{V_VDMA+1}, v28, 9, v49")
    e(f"v_lshl_add_u32 v{V_WQDMA}, v28, 13, v48")
    e(f"v_lshl_add_u32 v{V_WQDMA+1}, v28, 13, v49")
    e("v_and_b32 v48, 15, v28")
    e("v_xor_b32 v48, v27, v48")
    e("v_lshlrev_b32 v48, 4, v48")
    e(f"v_lshl_add_u32 v{V_KDMA}, v28, 9, v48")
    for i in range(1, 4):
        e(f"v_xor_b32 v{V_KDMA+i}, {(2*i)<<4}, v{V_KDMA}")
    e("s_waitcnt lgkmcnt(0)")
    e("s_cmp_eq_u32 s35, 0")
    for k in range(10):
        e(f"s_cselect_b32 s{40+k}, s{40+k}, s{50+k}")
    e("s_mul_i32 s3, s34, 114688")
    e(f"s_add_u32 s{S_X}, s40, s3"); e(f"s_addc_u32 s{S_X+1}, s41, 0"); e(f"s_mov_b32 s{S_X+2}, 114688"); e(f"s_mov_b32 s{S_X+3}, 0x20000")
    e("s_lshl_b32 s3, s33, 9")
    e(f"s_add_u32 s{S_WQ}, s46, s3"); e(f"s_addc_u32 s{S_WQ+1}, s47, 0"); e(f"s_sub_u32 s{S_WQ+2}, {448*8192}, s3"); e(f"s_mov_b32 s{S_WQ+3}, 0x20000")
    e("s_lshl_b32 s38, s34, 4")
    e("s_add_u32 s38, s38, s33")
    e("s_lshl_b32 s3, s38, 19")
    e(f"s_add_u32 s{S_K}, s42, s3"); e(f"s_addc_u32 s{S_K+1}, s43, 0"); e(f"s_mov_b32 s{S_K+2}, 524288"); e(f"s_mov_b32 s{S_K+3}, 0x20000")
    e(f"s_add_u32 s{S_V}, s44, s3"); e(f"s_addc_u32 s{S_V+1}, s45, 0"); e(f"s_mov_b32 s{S_V+2}, 524288"); e(f"s_mov_b32 s{S_V+3}, 0x20000")
    if cfg.get("codewarm"):
        e("s_getpc_b64 s[62:63]")
        e("v_lshlrev_b32 v53, 7, v0")
        for k in range(cfg["codewarm"]):
            g.vm(f"global_load_dword v54, v53, s[62:63]")
            e("v_add_u32 v53, 0x8000, v53")
    for c in iss[-1]:
        for grp in g.dma(c):
            for it in grp: g.emit(it)
    e("s_mul_i32 s3, s33, 229376")
    e(f"s_add_u32 s{S_WO}, s48, s3"); e(f"s_addc_u32 s{S_WO+1}, s49, 0"); e(f"s_mov_b32 s{S_WO+2}, 229376"); e(f"s_mov_b32 s{S_WO+3}, 0x20000")
    e("s_lshl_b32 s3, s35, 7")
    e("s_add_u32 s3, s3, s38")
    e("s_lshl_b32 s3, s3, 2")
    e(f"s_add_u32 s3, s3, s{S_W}")
    e("s_mul_i32 s3, s3, 28672")
    e(f"s_add_u32 s{S_WS}, s60, s3"); e(f"s_addc_u32 s{S_WS+1}, s61, 0"); e(f"s_mov_b32 s{S_WS+2}, 28672"); e(f"s_mov_b32 s{S_WS+3}, 0x20000")
    e(f"s_mov_b32 s{S_C}, {f32bits(math.log2(math.e)/16):#x}")
    e(f"s_mov_b32 s{S_THR}, {f32bits(cfg.get('thr', 8.0)):#x}")
    e("v_and_b32 v48, 0x13, v27")
    e("v_bfe_u32 v49, v27, 2, 1")
    e("v_lshl_or_b32 v48, v49, 3, v48")
    e("v_bfe_u32 v49, v27, 3, 1")
    e("v_lshl_or_b32 v48, v49, 2, v48")
    e("v_and_b32 v49, 15, v48")
    e("v_xor_b32 v49, v26, v49")
    e("v_lshlrev_b32 v49, 4, v49")
    e(f"v_lshl_add_u32 v{V_KRD}, v48, 9, v49")
    for s in range(1, 8):
        e(f"v_xor_b32 v{V_KRD+s}, {(2*s)<<4}, v{V_KRD}")
    e("v_bfe_u32 v48, v24, 2, 2")
    e("v_bfe_u32 v49, v24, 4, 1")
    e("v_and_b32 v50, 1, v24")
    e("v_bfe_u32 v51, v24, 1, 1")
    e("v_lshl_or_b32 v50, v50, 1, v51")
    e("v_lshlrev_b32 v50, 3, v50")
    e("v_lshl_or_b32 v50, v49, 5, v50")
    e("v_lshl_add_u32 v51, v26, 3, v48")
    e("v_lshl_or_b32 v52, v48, 6, v50")
    e("v_lshl_add_u32 v52, v51, 9, v52")
    e(f"v_add_u32 v{V_TRD}, 0x10000, v52")
    for d in range(1, 4):
        e(f"v_xor_b32 v{V_TRD+d}, {d<<6}, v{V_TRD}")
    e("v_lshrrev_b32 v52, 1, v48")
    e("v_lshl_or_b32 v52, v52, 6, v50")
    e(f"v_lshl_add_u32 v{V_WORD}, v51, 7, v52")
    e(f"v_xor_b32 v{V_WORD+1}, 64, v{V_WORD}")
    e("v_bfe_u32 v48, v27, 1, 3")
    e("v_xor_b32 v48, v26, v48")
    e("v_lshlrev_b32 v48, 4, v48")
    e("v_lshl_add_u32 v48, v27, 7, v48")
    e(f"v_lshl_add_u32 v{V_XRD}, v25, 12, v48")
    for s in range(1, 4):
        e(f"v_xor_b32 v{V_XRD+s}, {(2*s)<<4}, v{V_XRD}")
    e(f"v_mov_b32 v{V_M}, 0xff800000")
    e(f"v_mov_b32 v{V_L}, 0")
    for j in range(14):
        need = [("W", j), ("X", j >> 1)]
        sb = g.slot[("W", j)] * 16384 - 0x10000
        for d in range(4):
            e(f"v_add_u32 v{V_QTR+d}, {sb & 0xffffffff:#x}, v{V_TRD+d}")
        if j % 2 == 0:
            xb = g.slot[("X", j >> 1)] * 16384
            for s in range(4):
                e(f"v_add_u32 v{V_XRB+s}, {xb}, v{V_XRD+s}")
        g.stamp(f"q{j}w", 2)
        g.wait_chunks(need)
        e("s_barrier")
        g.stamp(f"q{j}", 1 if j == 0 else 2)
        if j % 2 == 0:
            for s in range(4):
                g.lg(f"ds_read_b128 {ar(A_X + 4*(2*j+s), 4)}, v{V_XRB+s}")
        fill = {}
        groups = [grp for c in iss.get(j, []) for grp in g.dma(c)]
        spread(fill, groups, list(range(0, 16)))
        ops = tr_ops(V_QTR, 0, lambda tt: ar(A_X + 4 * (2 * j + tt), 4), j == 0)
        g.stream(ops, fill, D=4)
    e("s_nop 7"); e("s_nop 3")
    for p in range(64):
        e(f"v_cvt_pk_bf16_f32 v{V_Q+p}, v{V_O+2*p}, v{V_O+2*p+1}")
    stubs = []
    for t in range(32):
        need = [("K", t)] + ([("V", t - 1)] if t else [])
        g.stamp(f"m{t}w", 1 if t == 0 else 2)
        g.wait_chunks(need)
        e("s_barrier")
        g.stamp(f"m{t}", 1 if t == 16 else 2)
        ops = []
        kb = g.slot[("K", t)] * 16384
        for s in range(16):
            c = "0" if s == 0 else vr(V_S, 16)
            ops.append(dict(reads=[f"ds_read_b128 {{f}}, v{V_KRD+(s&7)} offset:{kb + (s>>3)*256}"],
                            mf=f"{MF} {vr(V_S,16)}, {{f}}, {vr(V_Q+4*s,4)}, {c}"))
        fill = {}
        groups = [grp for c in iss.get(14 + t, []) for grp in g.dma(c)]
        spread(fill, groups, list(range(0, 16)))
        sm = softmax_items(V_P + 8 * (t & 1))
        if t == 0:
            g.stream(ops, fill)
            e("s_nop 7"); e("s_nop 3")
            for it in sm: e(it)
        else:
            pp = V_P + 8 * ((t - 1) & 1)
            ops += tr_ops(V_TRD, (g.slot[("V", t - 1)] - 4) * 16384, lambda tt: vr(pp + 4 * tt, 4), t == 1)
            pos = list(range(18, 32)); per = -(-len(sm) // len(pos))
            for k, it in enumerate(sm): fill.setdefault(pos[k // per], []).append(it)
            g.stream(ops, fill)
            e(f"s_cbranch_vccnz L_rs_{t}")
            a(f"L_rsb_{t}:")
            stubs.append(t)
    g.stamp("fw", 2)
    g.wait_chunks([("V", 31)])
    e("s_barrier")
    g.stamp("f")
    pp = V_P + 8
    ops = tr_ops(V_TRD, (g.slot[("V", 31)] - 4) * 16384, lambda tt: vr(pp + 4 * tt, 4), False)
    fill = {}; pre = {}
    D = 4
    groups = [grp for c in iss.get(46, []) for grp in g.dma(c)]
    spread(fill, groups, list(range(0, 12)))
    T = V_T
    fill.setdefault(0, []).extend([f"v_mov_b32 v{T}, v{V_L}", "s_nop 1", f"v_permlane32_swap_b32 v{V_L}, v{T}"])
    fill.setdefault(1, []).extend([f"v_add_f32 v{V_L}, v{V_L}, v{T}", f"v_rcp_f32 v{V_L}, v{V_L}"])
    for db in range(8):
        for p in range(8):
            fill.setdefault(2 * db + 4 + p // 4, []).append(f"v_cvt_pk_bf16_f32 v{V_Q+8*db+p}, v{V_O+16*db+2*p}, v{V_O+16*db+2*p+1}")
    V_ORD = V_KRD
    spol = cfg.get("pol_st", "sc1")
    for u in range(14):
        c, half = u >> 1, u & 1
        base_op = 16 + 16 * u
        ad = V_ORD + 2 * (u & 1)
        items = [f"v_add_u32 v{ad+nb}, {g.slot[('O', u)]*16384}, v{V_WORD+nb}" for nb in range(2)]
        def sync(u=u):
            if ("O", u) not in g.covered or iss.get(47 + u):
                if ("O", u) not in g.covered: g.wait_chunks([("O", u)])
                e("s_barrier")
            g.stamp(f"o{u}", 3)
        pre[base_op] = items + [sync]
        groups = [grp for cc in iss.get(47 + u, []) for grp in g.dma(cc)]
        spread(fill, groups, list(range(base_op - D, base_op - D + 12)))
        for t in range(8):
            for nb in range(2):
                acc = vr(V_O + 32 * (c & 1) + 16 * nb, 16)
                cc = "0" if (half == 0 and t == 0) else acc
                kk = 8 * half + t
                ops.append(dict(reads=[f"ds_read_b64_tr_b16 {{f0}}, v{ad+nb} offset:{t*2048}",
                                       f"ds_read_b64_tr_b16 {{f2}}, v{ad+nb} offset:{t*2048+512}"],
                                mf=f"{MF} {acc}, {{f}}, {vr(V_Q+4*kk,4)}, {cc}"))
    def epi(c):
        it = []
        ab = V_O + 32 * (c & 1); pk = V_O + 64 + 16 * (c & 1)
        for q in range(4):
            for p in range(4):
                r = ab + 8 * q + 2 * p
                it += [f"v_mul_f32 v{r}, v{V_L}, v{r}", f"v_mul_f32 v{r+1}, v{V_L}, v{r+1}", f"v_cvt_pk_bf16_f32 v{pk+4*q+p}, v{r}, v{r+1}"]
            if q == 0: it.append(f"s_mov_b32 s38, {c*4096}")
            it.append(("vm", f"buffer_store_dwordx4 {vr(pk+4*q,4)}, v{V_ST}, {srd(S_WS)}, s38 offen offset:{q*1024} {spol}"))
        return it
    for c in range(6):
        it = epi(c); p0 = 16 + 32 * (c + 1) + 3
        for k, x in enumerate(it): fill.setdefault(p0 + k // 2, []).append(x)
    g.stream(ops, fill, D=D, pre=pre)
    e("s_nop 7"); e("s_nop 3")
    for x in epi(6): g.emit(x)
    g.stamp("oend")
    if cfg.get("stamps"):
        e("s_waitcnt vmcnt(0)")
        g.stamp("drain")
        e("s_mov_b32 s24, s60"); e("s_mov_b32 s25, s61"); e(f"s_mov_b32 s26, {WS_BYTES}"); e("s_mov_b32 s27, 0x20000")
        e("s_lshl_b32 s38, s2, 9"); e(f"s_add_u32 s38, s38, {STAMP_OFF}")
        e("v_mov_b32 v3, 0"); e("v_cmp_eq_u32 vcc, 0, v0"); e("s_and_saveexec_b64 s[34:35], vcc"); e("s_cbranch_execz L_end_main")
        for k in range(g.nstamp): e(f"buffer_store_dword a{A_STAMP+k}, v3, s[24:27], s38 offen offset:{4*k}")
        cfg["_names"] = g.names
    a("L_end_main:")
    e("s_endpgm")
    for t in stubs:
        a(f"L_rs_{t}:")
        e(f"s_call_b64 s[{S_RET}:{S_RET+1}], L_rescale")
        e(f"s_branch L_rsb_{t}")
    a("L_rescale:")
    e("s_nop 15")
    for r in range(128): e(f"v_mul_f32 v{V_O+r}, v{V_ALPHA}, v{V_O+r}")
    e("s_nop 1")
    e(f"s_setpc_b64 s[{S_RET}:{S_RET+1}]")
    a(kdesc(K, 512, 256))
    return a.text()

def reduce_kernel(cfg, K):
    a = Asm(); e = lambda s: a("    " + s)
    a(kstart(K))
    e("s_cmp_ge_u32 s2, 448")
    e("s_cbranch_scc1 L_end_red")
    e("s_load_dwordx2 s[4:5], s[0:1], 80")
    e("s_load_dwordx2 s[8:9], s[0:1], 96")
    if cfg.get("stamps"): e("s_memrealtime s[40:41]")
    e("v_lshrrev_b32 v1, 6, v0")
    e("v_and_b32 v2, 63, v0")
    e("v_readfirstlane_b32 s3, v1")
    e("s_mul_i32 s12, s2, 9363")
    e("s_lshr_b32 s12, s12, 18")
    e("s_mul_i32 s13, s12, 28")
    e("s_sub_u32 s13, s2, s13")
    e("s_lshl_b32 s13, s13, 2")
    e("s_add_u32 s13, s13, s3")
    e("s_mul_i32 s14, s13, 9363")
    e("s_lshr_b32 s14, s14, 18")
    e("s_mul_i32 s15, s14, 28")
    e("s_sub_u32 s15, s13, s15")
    e("s_mul_i32 s16, s12, %d" % (16 * 114688))
    e("s_lshl_b32 s17, s13, 10")
    e("s_add_u32 s16, s16, s17")
    e("v_lshlrev_b32 v3, 4, v2")
    e("s_waitcnt lgkmcnt(0)")
    e(f"s_mov_b32 s10, {256*114688}"); e("s_mov_b32 s11, 0x20000")
    e(f"s_mov_b32 s6, {8*128*896*2}"); e("s_mov_b32 s7, 0x20000")
    rp = cfg.get("pol_rd", "")
    for h in range(16):
        e(f"buffer_load_dwordx4 v[{8+4*h}:{11+4*h}], v3, s[8:11], s16 offen {rp}")
        if h < 15: e("s_add_u32 s16, s16, 114688")
    e("s_and_b32 s17, s12, 7")
    e("s_lshl_b32 s17, s17, 7")
    e("s_lshl_b32 s18, s14, 5")
    e("s_add_u32 s17, s17, s18")
    e("s_mul_i32 s17, s17, 1792")
    e("s_lshr_b32 s18, s12, 3")
    e("s_mul_i32 s18, s18, 896")
    e("s_add_u32 s17, s17, s18")
    e("s_lshl_b32 s18, s15, 5")
    e("s_add_u32 s17, s17, s18")
    e("v_and_b32 v4, 31, v2")
    e("v_mul_u32_u24 v4, 1792, v4")
    e("v_lshrrev_b32 v5, 5, v2")
    e("v_lshl_add_u32 v4, v5, 4, v4")
    for h in range(16):
        e(f"s_waitcnt vmcnt({15-h})")
        for r in range(4):
            src = 8 + 4 * h + r
            if h == 0:
                e(f"v_lshlrev_b32 v{72+2*r}, 16, v{src}")
                e(f"v_and_b32 v{73+2*r}, 0xffff0000, v{src}")
            else:
                e(f"v_lshlrev_b32 v6, 16, v{src}")
                e(f"v_and_b32 v7, 0xffff0000, v{src}")
                e(f"v_add_f32 v{72+2*r}, v{72+2*r}, v6")
                e(f"v_add_f32 v{73+2*r}, v{73+2*r}, v7")
    for r in range(4): e(f"v_cvt_pk_bf16_f32 v{8+r}, v{72+2*r}, v{73+2*r}")
    e("buffer_store_dwordx4 v[8:11], v4, s[4:7], s17 offen")
    if cfg.get("stamps"):
        e("s_waitcnt vmcnt(0)")
        e("s_memrealtime s[42:43]")
        e("s_waitcnt lgkmcnt(0)")
        e("s_cmp_ge_u32 s2, 256"); e("s_cbranch_scc1 L_end_red")
        e(f"s_mov_b32 s10, {WS_BYTES}")
        e("s_lshl_b32 s38, s2, 9"); e(f"s_add_u32 s38, s38, {STAMP_OFF + 4*len(cfg['_names'])}")
        cfg["_names"] += ["rstart", "rend"]
        for k in range(4): e(f"v_mov_b32 v{32+k}, s{40+k}")
        e("v_mov_b32 v3, 0"); e("v_cmp_eq_u32 vcc, 0, v0"); e("s_and_saveexec_b64 s[34:35], vcc"); e("s_cbranch_execz L_end_red")
        e("buffer_store_dword v32, v3, s[8:11], s38 offen")
        e("buffer_store_dword v34, v3, s[8:11], s38 offen offset:4")
    a("L_end_red:")
    e("s_endpgm")
    a(kdesc(K, 80, 80, 48))
    return a.text()

def build(cfg):
    K1 = "attn_kernel"; K2 = "red_kernel"
    txt = HDR + header([(K1, 256, 256, 163840), (K2, 448, 256, 0)]) + main_kernel(cfg, K1) + reduce_kernel(cfg, K2)
    if cfg.get("stamps"): txt += "; STAMPS " + " ".join(cfg["_names"]) + "\n"
    errs = hazard.check(txt)
    if errs:
        print(len(errs), "HAZARDS"); print("\n".join(errs[:10])); raise SystemExit(1)
    return txt

if __name__ == "__main__":
    import json
    out = sys.argv[1]; cfg = json.loads(sys.argv[2]) if len(sys.argv) > 2 else {}
    open(out, "w").write(build(cfg))
```

```python
import sys, math, struct
from asmlib import *
import hazard

def f32bits(x): return struct.unpack("<I", struct.pack("<f", x))[0]

HDR = open("cdna_kernels/" + NAME + ".s.ref").read().split("; Override launch geometry")[0]

V_KRD = 1
V_TRD = 9
V_KDMA = 13
V_VDMA = 17
V_WODMA = 19
V_WORD = 20
V_M = 22; V_L = 23
V_T = 24
V_ALPHA = 30
V_ST = 31
V_P = 32
V_S = 48
V_Q = 64
V_O = 128
V_WQDMA = 32
V_XDMA = 34
V_XRD = 36
V_QTR = 40
V_XRB = 44
A_FR = 0
A_X = 32
NFR = 8
A_STAMP = 144
S_X, S_K, S_V, S_WQ, S_WO, S_WS = 4, 8, 12, 16, 20, 24
S_W = 28; S_WQ4 = 29; S_OFF = 30; S_C = 31; S_THR = 32; S_RET = 36
S_STAMP = 64
def srd(s): return f"s[{s}:{s+3}]"
def vr(b, n): return f"v[{b}:{b+n-1}]"
def ar(b, n): return f"a[{b}:{b+n-1}]"

class Gen:
    def __init__(self, cfg):
        self.cfg = cfg
        self.a = Asm()
        self.nvm = 0; self.nlg = 0
        self.done = {}
        self.slot = {}
        self.fr = 0
        self.nstamp = 0
        self.covered = set(); self.names = []
    def e(self, s): self.a("    " + s)
    def vm(self, s): self.e(s); self.nvm += 1
    def lg(self, s): self.e(s); self.nlg += 1
    def emit(self, item):
        if callable(item): item()
        elif isinstance(item, tuple):
            {"vm": self.vm, "lg": self.lg}[item[0]](item[1])
        else: self.e(item)
    def stamp(self, name, level=1):
        if self.cfg.get("stamps", 0) < level: return
        self.e(f"{self.cfg.get('clk','s_memrealtime')} s[{S_STAMP}:{S_STAMP+1}]")
        self.e("s_waitcnt lgkmcnt(0)")
        self.e(f"v_accvgpr_write_b32 a{A_STAMP+self.nstamp}, s{S_STAMP}")
        self.nstamp += 1; self.names.append(name)
        assert A_STAMP + self.nstamp <= 256
    def wait_chunks(self, chunks):
        last = max(self.done[c] for c in chunks)
        n = min(63, self.nvm - last)
        if not all(c in self.covered for c in chunks):
            self.e(f"s_waitcnt vmcnt({n})")
        for c, d in self.done.items():
            if d <= last: self.covered.add(c)
    def dma(self, ch):
        kind, idx = ch
        slot = self.slot[ch]
        pk = self.cfg.get("pol_kv", "nt"); pw = self.cfg.get("pol_w", ""); px = self.cfg.get("pol_x", ""); po = self.cfg.get("pol_wo", "")
        groups = []
        for i in range(4):
            g = []
            if i == 0: g.append(f"s_add_u32 m0, s{S_WQ4}, {slot*16384}")
            if kind == "K":
                if i == 0: g.append(f"s_mov_b32 s{S_OFF}, {idx*16384}")
                g.append(("vm", f"buffer_load_dwordx4 v{V_KDMA+i}, {srd(S_K)}, s{S_OFF} offen offset:{i*1024} {pk} lds"))
            elif kind == "V":
                if i == 0: g.append(f"s_mov_b32 s{S_OFF}, {idx*16384}")
                g.append(("vm", f"buffer_load_dwordx4 v{V_VDMA+(i&1)}, {srd(S_V)}, s{S_OFF} offen offset:{i*1024} {pk} lds"))
            elif kind == "W":
                g.append(f"s_mov_b32 s{S_OFF}, {idx*32*8192 + i*(2*8192-1024)}")
                g.append(("vm", f"buffer_load_dwordx4 v{V_WQDMA+(i&1)}, {srd(S_WQ)}, s{S_OFF} offen offset:{i*1024} {pw} lds"))
            elif kind == "X":
                g.append(f"s_mov_b32 s{S_OFF}, {idx*128 + i*(8*896-1024)}")
                g.append(("vm", f"buffer_load_dwordx4 v{V_XDMA+(i&1)}, {srd(S_X)}, s{S_OFF} offen offset:{i*1024} {px} lds"))
            elif kind == "O":
                c, half = idx >> 1, idx & 1
                g.append(f"s_mov_b32 s{S_OFF}, {half*128*896 + c*128 + i*(8*896-1024)}")
                g.append(("vm", f"buffer_load_dwordx4 v{V_WODMA}, {srd(S_WO)}, s{S_OFF} offen offset:{i*1024} {po} lds"))
            if i == 3:
                def mark(ch=ch): self.done[ch] = self.nvm
                g.append(mark)
            groups.append(g)
        return groups
    def stream(self, ops, fill, D=4, pre=None):
        pre = pre or {}
        n = len(ops); rdone = [None] * n; frs = [None] * n
        def doreads(i):
            for it in pre.get(i, []): self.emit(it)
            f = A_FR + 4 * (self.fr % NFR); self.fr += 1
            frs[i] = f
            for r in ops[i]["reads"]:
                self.lg(r.format(f=ar(f, 4), f0=ar(f, 2), f2=ar(f + 2, 2)))
            rdone[i] = self.nlg
        for i in range(min(D, n)): doreads(i)
        for it in fill.get(-1, []): self.emit(it)
        for i in range(n):
            w = self.nlg - rdone[i]
            assert w <= 15
            self.e(f"s_waitcnt lgkmcnt({w})")
            self.e(ops[i]["mf"].format(f=ar(frs[i], 4)))
            if i + D < n: doreads(i + D)
            for it in fill.get(i, []): self.emit(it)

MF = "v_mfma_f32_32x32x16_bf16"
def spread(fill, groups, positions):
    assert len(positions) >= len(groups), (len(positions), len(groups))
    for g, p in zip(groups, positions):
        fill.setdefault(p, []).extend(g)

def tr_ops(addr, base, bfrag, first_zero):
    ops = []
    for db in range(8):
        for tt in range(2):
            off = base + tt * 8192 + (db >> 2) * 256
            acc = vr(V_O + 16 * db, 16)
            c = "0" if (first_zero and tt == 0) else acc
            ops.append(dict(reads=[f"ds_read_b64_tr_b16 {{f0}}, v{addr+(db&3)} offset:{off}",
                                   f"ds_read_b64_tr_b16 {{f2}}, v{addr+(db&3)} offset:{off+2048}"],
                            mf=f"{MF} {acc}, {{f}}, {bfrag(tt)}, {c}"))
    return ops

def softmax_items(pn):
    S = V_S; T = V_T; it = []
    it += [f"v_max3_f32 v{T}, v{S}, v{S+1}, v{S+2}", f"v_max3_f32 v{T+1}, v{S+3}, v{S+4}, v{S+5}",
           f"v_max3_f32 v{T+2}, v{S+6}, v{S+7}, v{S+8}", f"v_max3_f32 v{T+3}, v{S+9}, v{S+10}, v{S+11}",
           f"v_max3_f32 v{T+4}, v{S+12}, v{S+13}, v{S+14}", f"v_max3_f32 v{T}, v{T}, v{T+1}, v{S+15}",
           f"v_max3_f32 v{T+2}, v{T+2}, v{T+3}, v{T+4}", f"v_max_f32 v{T}, v{T}, v{T+2}",
           f"v_mov_b32 v{T+1}, v{T}", "s_nop 1", f"v_permlane32_swap_b32 v{T}, v{T+1}",
           f"v_max_f32 v{T}, v{T}, v{T+1}", f"v_mul_f32 v{T}, s{S_C}, v{T}", f"v_sub_f32 v{T+1}, v{T}, v{V_M}",
           f"v_cmp_lt_f32 vcc, s{S_THR}, v{T+1}", "s_nop 1", f"v_cndmask_b32 v{T}, v{V_M}, v{T}, vcc",
           f"v_sub_f32 v{T+1}, v{V_M}, v{T}", f"v_exp_f32 v{V_ALPHA}, v{T+1}", f"v_mov_b32 v{V_M}, v{T}",
           f"v_mul_f32 v{V_L}, v{V_L}, v{V_ALPHA}"]
    fma = lambda i: f"v_fma_f32 v{S+i}, v{S+i}, s{S_C}, -v{V_M}"
    ex = lambda i: f"v_exp_f32 v{S+i}, v{S+i}"
    add = lambda i: f"v_add_f32 v{V_L}, v{V_L}, v{S+i}"
    cvt = lambda p: f"v_cvt_pk_bf16_f32 v{pn+p}, v{S+2*p}, v{S+2*p+1}"
    it += [fma(0), fma(1), ex(0), ex(1)]
    for p in range(1, 8):
        it += [fma(2*p), fma(2*p+1), ex(2*p), add(2*p-2), ex(2*p+1), add(2*p-1), cvt(p-1)]
    it += [add(14), add(15), cvt(7)]
    return it

def plan(cfg):
    iss = {}
    def add(p, c): iss.setdefault(p, []).append(c)
    for c in [("X", 0), ("W", 0), ("W", 1), ("K", 0)]: add(-1, c)
    torder = [("K", 1), ("V", 0), ("K", 2), ("V", 1), ("K", 3), ("V", 2)]
    tq = dict(zip(cfg.get("tpoints", [3, 5, 7, 9, 11, 12]), torder))
    for j in range(14):
        if j % 2 == 0 and (j + 2) // 2 < 7: add(j, ("X", (j + 2) // 2))
        if j + 2 < 14: add(j, ("W", j + 2))
        if j in tq: add(j, tq[j])
    skip = cfg.get("skip", 4)
    nk, nv = 4, 3
    for t in range(32):
        dist = 3 if t < skip else 2
        while nk <= min(31, t + dist): add(14 + t, ("K", nk)); nk += 1
        while nv <= min(31, t + dist - 1): add(14 + t, ("V", nv)); nv += 1
        if t == 30 and nv <= 31: add(14 + t, ("V", nv)); nv += 1
    assert nk == 32 and nv == 32
    use = lambda c: {"W": c[1], "X": 2 * c[1], "K": 14 + c[1], "V": 15 + c[1], "O": 47 + c[1]}[c[0]]
    def release(c):
        if c[0] == "O" or c == ("V", 31): return use(c) + 2
        return use(c) + 1
    slot = {}
    busy = {s: [] for s in range(10)}
    ipoint = {c: p for p, l in iss.items() for c in l}
    def free(s, a, b): return all(b <= x or a >= y for x, y in busy[s])
    def put(c, s):
        a, b = ipoint[c], release(c)
        assert free(s, a, b), (c, s, a, b, busy[s])
        busy[s].append((a, b)); slot[c] = s
    for kind, base in (("K", 0), ("V", 4)):
        for i in range(32):
            c = (kind, i)
            cand = [s for s in range(base, base + 4) if free(s, ipoint[c], release(c))]
            assert cand, c
            put(c, cand[0])
    for c in sorted([c for c in ipoint if c[0] in "WX"], key=lambda c: -release(c)):
        cand = [s for s in range(10) if free(s, ipoint[c], release(c))]
        assert cand, (c, busy)
        put(c, cand[0])
    p = 14 + cfg.get("wo_start", 10)
    for u in range(14):
        c = ("O", u)
        while True:
            cand = [s for s in range(10) if free(s, p, release(c))]
            if cand: break
            p += 1
        assert p < use(c)
        ipoint[c] = p; add(p, c); put(c, cand[0])
        if p < 14 + 29: p += cfg.get("wo_step", 2)
    return iss, slot

def main_kernel(cfg, K):
    g = Gen(cfg); a = g.a; e = g.e
    iss, g.slot = plan(cfg)
    if cfg.get("verbose"):
        for p in sorted(iss): print(p, [(c, g.slot[c]) for c in iss[p]])
    a(kstart(K))
    e("s_cmp_ge_u32 s2, 256")
    e("s_cbranch_scc1 L_end_main")
    e("s_load_dwordx16 s[40:55], s[0:1], 0")
    e("s_load_dwordx4 s[56:59], s[0:1], 64")
    e("s_load_dwordx2 s[60:61], s[0:1], 96")
    g.stamp("start")
    e("s_and_b32 s3, s2, 3")
    e("s_lshl_b32 s3, s3, 2")
    e("s_bfe_u32 s33, s2, 0x20003")
    e("s_or_b32 s33, s33, s3")
    e("s_lshr_b32 s34, s2, 5")
    e("s_bfe_u32 s35, s2, 0x10002")
    e("v_and_b32 v24, 63, v0")
    e("v_lshrrev_b32 v25, 6, v0")
    e("v_lshrrev_b32 v26, 5, v24")
    e(f"v_readfirstlane_b32 s{S_W}, v25")
    e("v_and_b32 v27, 31, v24")
    e(f"v_lshlrev_b32 v{V_ST}, 4, v24")
    e(f"s_lshl_b32 s{S_WQ4}, s{S_W}, 12")
    e("v_lshrrev_b32 v28, 3, v24")
    e("v_lshl_add_u32 v28, v25, 5, v28")
    e("v_mul_u32_u24 v28, 896, v28")
    e("v_and_b32 v29, 7, v24")
    e("v_lshrrev_b32 v30, 4, v24")
    e("v_xor_b32 v48, v29, v30")
    e(f"v_lshl_add_u32 v{V_XDMA}, v48, 4, v28")
    e("v_xor_b32 v48, 4, v48")
    e(f"v_lshl_add_u32 v{V_XDMA+1}, v48, 4, v28")
    e("v_and_b32 v48, 1, v30")
    e("v_lshlrev_b32 v48, 2, v48")
    e("v_xor_b32 v48, v29, v48")
    e(f"v_lshl_add_u32 v{V_WODMA}, v48, 4, v28")
    e("v_lshl_add_u32 v28, v25, 3, v26")
    e("v_lshlrev_b32 v48, 2, v26")
    e("v_xor_b32 v48, v27, v48")
    e("v_lshlrev_b32 v48, 4, v48")
    e("v_xor_b32 v49, 0x80, v48")
    e(f"v_lshl_add_u32 v{V_VDMA}, v28, 9, v48")
    e(f"v_lshl_add_u32 v{V_VDMA+1}, v28, 9, v49")
    e(f"v_lshl_add_u32 v{V_WQDMA}, v28, 13, v48")
    e(f"v_lshl_add_u32 v{V_WQDMA+1}, v28, 13, v49")
    e("v_and_b32 v48, 15, v28")
    e("v_xor_b32 v48, v27, v48")
    e("v_lshlrev_b32 v48, 4, v48")
    e(f"v_lshl_add_u32 v{V_KDMA}, v28, 9, v48")
    for i in range(1, 4):
        e(f"v_xor_b32 v{V_KDMA+i}, {(2*i)<<4}, v{V_KDMA}")
    e("s_waitcnt lgkmcnt(0)")
    e("s_cmp_eq_u32 s35, 0")
    for k in range(10):
        e(f"s_cselect_b32 s{40+k}, s{40+k}, s{50+k}")
    e("s_mul_i32 s3, s34, 114688")
    e(f"s_add_u32 s{S_X}, s40, s3"); e(f"s_addc_u32 s{S_X+1}, s41, 0"); e(f"s_mov_b32 s{S_X+2}, 114688"); e(f"s_mov_b32 s{S_X+3}, 0x20000")
    e("s_lshl_b32 s3, s33, 9")
    e(f"s_add_u32 s{S_WQ}, s46, s3"); e(f"s_addc_u32 s{S_WQ+1}, s47, 0"); e(f"s_sub_u32 s{S_WQ+2}, {448*8192}, s3"); e(f"s_mov_b32 s{S_WQ+3}, 0x20000")
    e("s_lshl_b32 s38, s34, 4")
    e("s_add_u32 s38, s38, s33")
    e("s_lshl_b32 s3, s38, 19")
    e(f"s_add_u32 s{S_K}, s42, s3"); e(f"s_addc_u32 s{S_K+1}, s43, 0"); e(f"s_mov_b32 s{S_K+2}, 524288"); e(f"s_mov_b32 s{S_K+3}, 0x20000")
    e(f"s_add_u32 s{S_V}, s44, s3"); e(f"s_addc_u32 s{S_V+1}, s45, 0"); e(f"s_mov_b32 s{S_V+2}, 524288"); e(f"s_mov_b32 s{S_V+3}, 0x20000")
    if cfg.get("codewarm"):
        e("s_getpc_b64 s[62:63]")
        e("v_lshlrev_b32 v53, 7, v0")
        for k in range(cfg["codewarm"]):
            g.vm(f"global_load_dword v54, v53, s[62:63]")
            e("v_add_u32 v53, 0x8000, v53")
    for c in iss[-1]:
        for grp in g.dma(c):
            for it in grp: g.emit(it)
    e("s_mul_i32 s3, s33, 229376")
    e(f"s_add_u32 s{S_WO}, s48, s3"); e(f"s_addc_u32 s{S_WO+1}, s49, 0"); e(f"s_mov_b32 s{S_WO+2}, 229376"); e(f"s_mov_b32 s{S_WO+3}, 0x20000")
    e("s_lshl_b32 s3, s35, 7")
    e("s_add_u32 s3, s3, s38")
    e("s_lshl_b32 s3, s3, 2")
    e(f"s_add_u32 s3, s3, s{S_W}")
    e("s_mul_i32 s3, s3, 28672")
    e(f"s_add_u32 s{S_WS}, s60, s3"); e(f"s_addc_u32 s{S_WS+1}, s61, 0"); e(f"s_mov_b32 s{S_WS+2}, 28672"); e(f"s_mov_b32 s{S_WS+3}, 0x20000")
    e(f"s_mov_b32 s{S_C}, {f32bits(math.log2(math.e)/16):#x}")
    e(f"s_mov_b32 s{S_THR}, {f32bits(cfg.get('thr', 8.0)):#x}")
    e("v_and_b32 v48, 0x13, v27")
    e("v_bfe_u32 v49, v27, 2, 1")
    e("v_lshl_or_b32 v48, v49, 3, v48")
    e("v_bfe_u32 v49, v27, 3, 1")
    e("v_lshl_or_b32 v48, v49, 2, v48")
    e("v_and_b32 v49, 15, v48")
    e("v_xor_b32 v49, v26, v49")
    e("v_lshlrev_b32 v49, 4, v49")
    e(f"v_lshl_add_u32 v{V_KRD}, v48, 9, v49")
    for s in range(1, 8):
        e(f"v_xor_b32 v{V_KRD+s}, {(2*s)<<4}, v{V_KRD}")
    e("v_bfe_u32 v48, v24, 2, 2")
    e("v_bfe_u32 v49, v24, 4, 1")
    e("v_and_b32 v50, 1, v24")
    e("v_bfe_u32 v51, v24, 1, 1")
    e("v_lshl_or_b32 v50, v50, 1, v51")
    e("v_lshlrev_b32 v50, 3, v50")
    e("v_lshl_or_b32 v50, v49, 5, v50")
    e("v_lshl_add_u32 v51, v26, 3, v48")
    e("v_lshl_or_b32 v52, v48, 6, v50")
    e("v_lshl_add_u32 v52, v51, 9, v52")
    e(f"v_add_u32 v{V_TRD}, 0x10000, v52")
    for d in range(1, 4):
        e(f"v_xor_b32 v{V_TRD+d}, {d<<6}, v{V_TRD}")
    e("v_lshrrev_b32 v52, 1, v48")
    e("v_lshl_or_b32 v52, v52, 6, v50")
    e(f"v_lshl_add_u32 v{V_WORD}, v51, 7, v52")
    e(f"v_xor_b32 v{V_WORD+1}, 64, v{V_WORD}")
    e("v_bfe_u32 v48, v27, 1, 3")
    e("v_xor_b32 v48, v26, v48")
    e("v_lshlrev_b32 v48, 4, v48")
    e("v_lshl_add_u32 v48, v27, 7, v48")
    e(f"v_lshl_add_u32 v{V_XRD}, v25, 12, v48")
    for s in range(1, 4):
        e(f"v_xor_b32 v{V_XRD+s}, {(2*s)<<4}, v{V_XRD}")
    e(f"v_mov_b32 v{V_M}, 0xff800000")
    e(f"v_mov_b32 v{V_L}, 0")
    for j in range(14):
        need = [("W", j), ("X", j >> 1)]
        sb = g.slot[("W", j)] * 16384 - 0x10000
        for d in range(4):
            e(f"v_add_u32 v{V_QTR+d}, {sb & 0xffffffff:#x}, v{V_TRD+d}")
        if j % 2 == 0:
            xb = g.slot[("X", j >> 1)] * 16384
            for s in range(4):
                e(f"v_add_u32 v{V_XRB+s}, {xb}, v{V_XRD+s}")
        g.stamp(f"q{j}w", 2)
        g.wait_chunks(need)
        e("s_barrier")
        g.stamp(f"q{j}", 1 if j == 0 else 2)
        if j % 2 == 0:
            for s in range(4):
                g.lg(f"ds_read_b128 {ar(A_X + 4*(2*j+s), 4)}, v{V_XRB+s}")
        fill = {}
        groups = [grp for c in iss.get(j, []) for grp in g.dma(c)]
        spread(fill, groups, list(range(0, 16)))
        ops = tr_ops(V_QTR, 0, lambda tt: ar(A_X + 4 * (2 * j + tt), 4), j == 0)
        g.stream(ops, fill, D=4)
    e("s_nop 7"); e("s_nop 3")
    for p in range(64):
        e(f"v_cvt_pk_bf16_f32 v{V_Q+p}, v{V_O+2*p}, v{V_O+2*p+1}")
    stubs = []
    for t in range(32):
        need = [("K", t)] + ([("V", t - 1)] if t else [])
        g.stamp(f"m{t}w", 1 if t == 0 else 2)
        g.wait_chunks(need)
        e("s_barrier")
        g.stamp(f"m{t}", 1 if t == 16 else 2)
        ops = []
        kb = g.slot[("K", t)] * 16384
        for s in range(16):
            c = "0" if s == 0 else vr(V_S, 16)
            ops.append(dict(reads=[f"ds_read_b128 {{f}}, v{V_KRD+(s&7)} offset:{kb + (s>>3)*256}"],
                            mf=f"{MF} {vr(V_S,16)}, {{f}}, {vr(V_Q+4*s,4)}, {c}"))
        fill = {}
        groups = [grp for c in iss.get(14 + t, []) for grp in g.dma(c)]
        spread(fill, groups, list(range(0, 16)))
        sm = softmax_items(V_P + 8 * (t & 1))
        if t == 0:
            g.stream(ops, fill)
            e("s_nop 7"); e("s_nop 3")
            for it in sm: e(it)
        else:
            pp = V_P + 8 * ((t - 1) & 1)
            ops += tr_ops(V_TRD, (g.slot[("V", t - 1)] - 4) * 16384, lambda tt: vr(pp + 4 * tt, 4), t == 1)
            pos = list(range(18, 32)); per = -(-len(sm) // len(pos))
            for k, it in enumerate(sm): fill.setdefault(pos[k // per], []).append(it)
            g.stream(ops, fill)
            e(f"s_cbranch_vccnz L_rs_{t}")
            a(f"L_rsb_{t}:")
            stubs.append(t)
    g.stamp("fw", 2)
    g.wait_chunks([("V", 31)])
    e("s_barrier")
    g.stamp("f")
    pp = V_P + 8
    ops = tr_ops(V_TRD, (g.slot[("V", 31)] - 4) * 16384, lambda tt: vr(pp + 4 * tt, 4), False)
    fill = {}; pre = {}
    D = 4
    groups = [grp for c in iss.get(46, []) for grp in g.dma(c)]
    spread(fill, groups, list(range(0, 12)))
    T = V_T
    fill.setdefault(0, []).extend([f"v_mov_b32 v{T}, v{V_L}", "s_nop 1", f"v_permlane32_swap_b32 v{V_L}, v{T}"])
    fill.setdefault(1, []).extend([f"v_add_f32 v{V_L}, v{V_L}, v{T}", f"v_rcp_f32 v{V_L}, v{V_L}"])
    for db in range(8):
        for p in range(8):
            fill.setdefault(2 * db + 4 + p // 4, []).append(f"v_cvt_pk_bf16_f32 v{V_Q+8*db+p}, v{V_O+16*db+2*p}, v{V_O+16*db+2*p+1}")
    V_ORD = V_KRD
    spol = cfg.get("pol_st", "sc1")
    for u in range(14):
        c, half = u >> 1, u & 1
        base_op = 16 + 16 * u
        ad = V_ORD + 2 * (u & 1)
        items = [f"v_add_u32 v{ad+nb}, {g.slot[('O', u)]*16384}, v{V_WORD+nb}" for nb in range(2)]
        def sync(u=u):
            if ("O", u) not in g.covered or iss.get(47 + u):
                if ("O", u) not in g.covered: g.wait_chunks([("O", u)])
                e("s_barrier")
            g.stamp(f"o{u}", 3)
        pre[base_op] = items + [sync]
        groups = [grp for cc in iss.get(47 + u, []) for grp in g.dma(cc)]
        spread(fill, groups, list(range(base_op - D, base_op - D + 12)))
        for t in range(8):
            for nb in range(2):
                acc = vr(V_O + 32 * (c & 1) + 16 * nb, 16)
                cc = "0" if (half == 0 and t == 0) else acc
                kk = 8 * half + t
                ops.append(dict(reads=[f"ds_read_b64_tr_b16 {{f0}}, v{ad+nb} offset:{t*2048}",
                                       f"ds_read_b64_tr_b16 {{f2}}, v{ad+nb} offset:{t*2048+512}"],
                                mf=f"{MF} {acc}, {{f}}, {vr(V_Q+4*kk,4)}, {cc}"))
    def epi(c):
        it = []
        ab = V_O + 32 * (c & 1); pk = V_O + 64 + 16 * (c & 1)
        for q in range(4):
            for p in range(4):
                r = ab + 8 * q + 2 * p
                it += [f"v_mul_f32 v{r}, v{V_L}, v{r}", f"v_mul_f32 v{r+1}, v{V_L}, v{r+1}", f"v_cvt_pk_bf16_f32 v{pk+4*q+p}, v{r}, v{r+1}"]
            if q == 0: it.append(f"s_mov_b32 s38, {c*4096}")
            it.append(("vm", f"buffer_store_dwordx4 {vr(pk+4*q,4)}, v{V_ST}, {srd(S_WS)}, s38 offen offset:{q*1024} {spol}"))
        return it
    for c in range(6):
        it = epi(c); p0 = 16 + 32 * (c + 1) + 3
        for k, x in enumerate(it): fill.setdefault(p0 + k // 2, []).append(x)
    g.stream(ops, fill, D=D, pre=pre)
    e("s_nop 7"); e("s_nop 3")
    for x in epi(6): g.emit(x)
    g.stamp("oend")
    if cfg.get("stamps"):
        e("s_waitcnt vmcnt(0)")
        g.stamp("drain")
        e("s_mov_b32 s24, s60"); e("s_mov_b32 s25, s61"); e(f"s_mov_b32 s26, {WS_BYTES}"); e("s_mov_b32 s27, 0x20000")
        e("s_lshl_b32 s38, s2, 9"); e(f"s_add_u32 s38, s38, {STAMP_OFF}")
        e("v_mov_b32 v3, 0"); e("v_cmp_eq_u32 vcc, 0, v0"); e("s_and_saveexec_b64 s[34:35], vcc"); e("s_cbranch_execz L_end_main")
        for k in range(g.nstamp): e(f"buffer_store_dword a{A_STAMP+k}, v3, s[24:27], s38 offen offset:{4*k}")
        cfg["_names"] = g.names
        if cfg.get("dbgstamps"):
            e("s_load_dwordx2 s[24:25], s[0:1], 88"); e("s_mov_b32 s26, 256"); e("s_waitcnt lgkmcnt(0)")
            for k in range(g.nstamp):
                e(f"v_accvgpr_read_b32 v4, a{A_STAMP+k}")
                e(f"v_not_b32 v5, v4")
                e(f"buffer_atomic_umax v4, v3, s[24:27], 0 offen offset:{8*k+4}")
                e(f"buffer_atomic_umax v5, v3, s[24:27], 0 offen offset:{8*k}")
                e("s_waitcnt vmcnt(0)")
    a("L_end_main:")
    e("s_endpgm")
    for t in stubs:
        a(f"L_rs_{t}:")
        e(f"s_call_b64 s[{S_RET}:{S_RET+1}], L_rescale")
        e(f"s_branch L_rsb_{t}")
    a("L_rescale:")
    e("s_nop 15")
    for r in range(128): e(f"v_mul_f32 v{V_O+r}, v{V_ALPHA}, v{V_O+r}")
    e("s_nop 1")
    e(f"s_setpc_b64 s[{S_RET}:{S_RET+1}]")
    a(kdesc(K, 512, 256))
    return a.text()

def reduce_kernel(cfg, K):
    a = Asm(); e = lambda s: a("    " + s)
    a(kstart(K))
    e("s_cmp_ge_u32 s2, 448")
    e("s_cbranch_scc1 L_end_red")
    e("s_load_dwordx2 s[4:5], s[0:1], 80")
    e("s_load_dwordx2 s[8:9], s[0:1], 96")
    if cfg.get("stamps"): e("s_memrealtime s[40:41]")
    e("v_lshrrev_b32 v1, 6, v0")
    e("v_and_b32 v2, 63, v0")
    e("v_readfirstlane_b32 s3, v1")
    e("s_mul_i32 s12, s2, 9363")
    e("s_lshr_b32 s12, s12, 18")
    e("s_mul_i32 s13, s12, 28")
    e("s_sub_u32 s13, s2, s13")
    e("s_lshl_b32 s13, s13, 2")
    e("s_add_u32 s13, s13, s3")
    e("s_mul_i32 s14, s13, 9363")
    e("s_lshr_b32 s14, s14, 18")
    e("s_mul_i32 s15, s14, 28")
    e("s_sub_u32 s15, s13, s15")
    e("s_mul_i32 s16, s12, %d" % (16 * 114688))
    e("s_lshl_b32 s17, s13, 10")
    e("s_add_u32 s16, s16, s17")
    e("v_lshlrev_b32 v3, 4, v2")
    e("s_waitcnt lgkmcnt(0)")
    e(f"s_mov_b32 s10, {256*114688}"); e("s_mov_b32 s11, 0x20000")
    e(f"s_mov_b32 s6, {8*128*896*2}"); e("s_mov_b32 s7, 0x20000")
    rp = cfg.get("pol_rd", "")
    for h in range(16):
        e(f"buffer_load_dwordx4 v[{8+4*h}:{11+4*h}], v3, s[8:11], s16 offen {rp}")
        if h < 15: e("s_add_u32 s16, s16, 114688")
    e("s_and_b32 s17, s12, 7")
    e("s_lshl_b32 s17, s17, 7")
    e("s_lshl_b32 s18, s14, 5")
    e("s_add_u32 s17, s17, s18")
    e("s_mul_i32 s17, s17, 1792")
    e("s_lshr_b32 s18, s12, 3")
    e("s_mul_i32 s18, s18, 896")
    e("s_add_u32 s17, s17, s18")
    e("s_lshl_b32 s18, s15, 5")
    e("s_add_u32 s17, s17, s18")
    e("v_and_b32 v4, 31, v2")
    e("v_mul_u32_u24 v4, 1792, v4")
    e("v_lshrrev_b32 v5, 5, v2")
    e("v_lshl_add_u32 v4, v5, 4, v4")
    for h in range(16):
        e(f"s_waitcnt vmcnt({15-h})")
        for r in range(4):
            src = 8 + 4 * h + r
            if h == 0:
                e(f"v_lshlrev_b32 v{72+2*r}, 16, v{src}")
                e(f"v_and_b32 v{73+2*r}, 0xffff0000, v{src}")
            else:
                e(f"v_lshlrev_b32 v6, 16, v{src}")
                e(f"v_and_b32 v7, 0xffff0000, v{src}")
                e(f"v_add_f32 v{72+2*r}, v{72+2*r}, v6")
                e(f"v_add_f32 v{73+2*r}, v{73+2*r}, v7")
    for r in range(4): e(f"v_cvt_pk_bf16_f32 v{8+r}, v{72+2*r}, v{73+2*r}")
    e("buffer_store_dwordx4 v[8:11], v4, s[4:7], s17 offen")
    if cfg.get("stamps"):
        e("s_waitcnt vmcnt(0)")
        e("s_memrealtime s[42:43]")
        e("s_waitcnt lgkmcnt(0)")
        e("s_cmp_ge_u32 s2, 256"); e("s_cbranch_scc1 L_end_red")
        e(f"s_mov_b32 s10, {WS_BYTES}")
        e("s_lshl_b32 s38, s2, 9"); e(f"s_add_u32 s38, s38, {STAMP_OFF + 4*len(cfg['_names'])}")
        cfg["_names"] += ["rstart", "rend"]
        for k in range(4): e(f"v_mov_b32 v{32+k}, s{40+k}")
        e("v_mov_b32 v3, 0"); e("v_cmp_eq_u32 vcc, 0, v0"); e("s_and_saveexec_b64 s[34:35], vcc"); e("s_cbranch_execz L_end_red")
        e("buffer_store_dword v32, v3, s[8:11], s38 offen")
        e("buffer_store_dword v34, v3, s[8:11], s38 offen offset:4")
    a("L_end_red:")
    e("s_endpgm")
    a(kdesc(K, 80, 80, 48))
    return a.text()

def build(cfg):
    K1 = "attn_kernel"; K2 = "red_kernel"
    txt = HDR + header([(K1, 256, 256, 163840), (K2, 448, 256, 0)]) + main_kernel(cfg, K1) + reduce_kernel(cfg, K2)
    if cfg.get("stamps"): txt += "; STAMPS " + " ".join(cfg["_names"]) + "\n"
    errs = hazard.check(txt)
    if errs:
        print(len(errs), "HAZARDS"); print("\n".join(errs[:10])); raise SystemExit(1)
    return txt

if __name__ == "__main__":
    import json
    out = sys.argv[1]; cfg = json.loads(sys.argv[2]) if len(sys.argv) > 2 else {}
    open(out, "w").write(build(cfg))
```
